```python
import torch

def _softmax(x, axis=-1):
    return torch.softmax(x, dim=axis)
def _gelu(x):
    return torch.nn.functional.gelu(x, approximate="tanh")
def _silu(x):
    return torch.nn.functional.silu(x)
def _sigmoid(x):
    return torch.sigmoid(x)
def _layernorm(x, axis=-1, eps=1e-5):
    m = x.mean(dim=axis, keepdim=True)
    v = x.var(dim=axis, keepdim=True, unbiased=False)
    return (x - m) / torch.sqrt(v + eps)
def _scatter_add(tgt, idx, src, axis=0):
    return tgt.clone().index_add_(axis, idx, src)
def _segment_sum(src, seg, n):
    out = torch.zeros((n,) + src.shape[1:], dtype=src.dtype)
    return out.index_add_(0, seg, src)
def _pad(x, pw):
    flat = tuple(v for pair in reversed(pw) for v in pair)
    return torch.nn.functional.pad(x, flat)

kernel_name = 'parallel_sum__linear_attn_block__mixer_token_mlp__prompt'

def setup_inputs():

    _w = (lambda a: (lambda t: t.to(torch.bfloat16) if t.is_floating_point() else t)(torch.as_tensor(a)))
    def _A_setup():
        B, S, D = 1, 2048, 576
        return {
            "x": _w((lambda *s: torch.randn(*s, dtype=torch.bfloat16) * 0.05)(B, S, D)),
            "wqkv": _w((lambda *s: torch.randn(*s, dtype=torch.bfloat16) * 0.05)(D, 3 * D)),
            "wo": _w((lambda *s: torch.randn(*s, dtype=torch.bfloat16) * 0.05)(D, D)),
        }
    _A_in = _A_setup()

    def _B_setup():
        B, S, D, F = 1, 2048, 576, 4608
        return {
            "x": _w((lambda *s: torch.randn(*s, dtype=torch.bfloat16) * 0.05)(B, S, D)),
            "w1": _w((lambda *s: torch.randn(*s, dtype=torch.bfloat16) * 0.4)(S, F) * (S ** -0.5)),
            "b1": _w((lambda *s: torch.randn(*s, dtype=torch.bfloat16) * 3.2)(F) * 0.02),
            "w2": _w((lambda *s: torch.randn(*s, dtype=torch.bfloat16) * 0.2)(F, S) * (F ** -0.5)),
            "b2": _w((lambda *s: torch.randn(*s, dtype=torch.bfloat16) * 0.4)(S) * 0.02),
        }
    _B_in = _B_setup()

    return {
        "A_x": _A_in["x"],
        "A_wqkv": _A_in["wqkv"],
        "A_wo": _A_in["wo"],
        "B_x": _B_in["x"],
        "B_w1": _B_in["w1"],
        "B_b1": _B_in["b1"],
        "B_w2": _B_in["w2"],
        "B_b2": _B_in["b2"],
    }

def reference(A_x, A_wqkv, A_wo, B_x, B_w1, B_b1, B_w2, B_b2):
    def _A_ref(x, wqkv, wo):
        B, S, D = x.shape
        H = 32; Dh = D // H
        qkv = (lambda x, *d: x.permute(*d))((x @ wqkv).reshape(B, S, 3, H, Dh), 2, 0, 3, 1, 4)
        q, k, v = qkv[0], qkv[1], qkv[2]
        phi = lambda t: torch.where(t > 0, t + 1, torch.exp(t)) + 1e-6
        pq, pk = phi(q), phi(k)
        kv = torch.einsum("bhsd,bhse->bhde", pk, v)
        z = torch.einsum("bhsd->bhd", pk)
        num = torch.einsum("bhqd,bhde->bhqe", pq, kv)
        den = torch.einsum("bhqd,bhd->bhq", pq, z)[..., None] + 1e-6
        o = num / den
        return (lambda x, *d: x.permute(*d))(o, 0, 2, 1, 3).reshape(B, S, D) @ wo

    def _B_ref(x, w1, b1, w2, b2):
        B, S, D = x.shape
        h = _layernorm(x, axis=-1)
        u = torch.einsum("bsd,sf->bdf", h, w1) + b1
        u = _gelu(u)
        y = torch.einsum("bdf,fs->bds", u, w2) + b2
        return (lambda x, *d: x.permute(*d))(y, 0, 2, 1)

    x = A_x
    xn = _layernorm(x, axis=-1)
    return x + _A_ref(xn, A_wqkv, A_wo) + _B_ref(xn, B_w1, B_b1, B_w2, B_b2)
```

```python
class Asm:
    def __init__(self):
        self.L = []
        self.uid = 0
    def e(self, s):
        for line in s.strip("\n").split("\n"):
            line = line.strip()
            if not line: continue
            if line.endswith(":") and " " not in line: self.L.append(line)
            else: self.L.append("  " + line)
    def c(self, s): self.L.append("  ; " + s)
    def lab(self, name): self.L.append(name + ":")
    def newlab(self, base):
        self.uid += 1
        return f"L_{base}_{self.uid}"
    def text(self): return "\n".join(self.L) + "\n"
    def srd(self, d, lo, hi, nbytes):
        self.e(f"s_mov_b32 s{d}, s{lo}\ns_and_b32 s{d+1}, s{hi}, 0xffff\ns_mov_b32 s{d+2}, {nbytes}\ns_mov_b32 s{d+3}, 0x20000")
    def srd_off(self, d, lo, hi, off, nbytes):
        self.e(f"s_add_u32 s{d}, s{lo}, {off}\ns_addc_u32 s{d+1}, s{hi}, 0\ns_and_b32 s{d+1}, s{d+1}, 0xffff\ns_mov_b32 s{d+2}, {nbytes}\ns_mov_b32 s{d+3}, 0x20000")
    def sdiv(self, q, src, d, tmp):
        self.e(f"s_mov_b32 {tmp}, {(2**32 + d - 1)//d}\ns_mul_hi_u32 {q}, {src}, {tmp}")
    def vdiv(self, q, src, d, stmp):
        self.e(f"s_mov_b32 {stmp}, {(2**32 + d - 1)//d}\nv_mul_hi_u32 {q}, {src}, {stmp}")

def vr(a, n=1):
    return f"v{a}" if n == 1 else f"v[{a}:{a+n-1}]"
def sr(a, n=1):
    return f"s{a}" if n == 1 else f"s[{a}:{a+n-1}]"

def kernel_head(A, name):
    A.L += [".text", f".globl {name}", ".p2align 8", f".type {name},@function", f"{name}:"]
def kernel_desc(A, name, vgpr, sgpr=102, accum=None):
    if accum is None: accum = (vgpr + 3)//4*4
    A.L += ['.section .rodata,"a"', ".p2align 6", f".amdhsa_kernel {name}",
            f"  .amdhsa_next_free_vgpr {vgpr}", f"  .amdhsa_next_free_sgpr {sgpr}", f"  .amdhsa_accum_offset {accum}",
            "  .amdhsa_group_segment_fixed_size 0", "  .amdhsa_kernarg_size 88", "  .amdhsa_user_sgpr_count 2",
            "  .amdhsa_user_sgpr_kernarg_segment_ptr 1", "  .amdhsa_system_sgpr_workgroup_id_x 1",
            ".end_amdhsa_kernel"]
```

```python
from asm import *
class LoaderCfg:
    pass

def loader(A, tag, runs, nst, NS, stage_bytes, lag, stepP, stepW, CL, R, hook=None):
    per = sum(len(r[1]) for r in runs)
    sK, sCnt, sLo, sHi, sSlot, sP, sW, sJ, bP, bW = (R[k] for k in ("K","Cnt","Lo","Hi","Slot","P","W","J","bP","bW"))
    def issue():
        A.e(f"s_mul_i32 {sP}, {sK}, {stepP}\ns_add_u32 {sP}, {sP}, {bP}\ns_mul_i32 {sW}, {sK}, {stepW}\ns_add_u32 {sW}, {sW}, {bW}")
        for lo, ins in runs:
            A.e(f"s_add_u32 m0, {sSlot}, {lo}")
            A.e("s_nop 0")
            for (v, srd, kind, imm, fl) in ins:
                so = sP if kind == 'P' else sW
                off = f" offset:{imm}" if imm else ""
                A.e(f"buffer_load_dwordx4 v{v}, {srd}, {so} offen{off}{fl} lds")
        A.e(f"""
        s_add_u32 {sSlot}, {sSlot}, {stage_bytes}
        s_cmp_eq_u32 {sSlot}, {NS*stage_bytes}
        s_cselect_b32 {sSlot}, 0, {sSlot}
        s_add_u32 {sK}, {sK}, 1
        s_cmp_eq_u32 {sK}, {sHi}
        s_cselect_b32 {sK}, {sLo}, {sK}
        """)
        if CL < nst:
            A.e(f"""
            s_add_u32 {sCnt}, {sCnt}, 1
            s_cmp_eq_u32 {sCnt}, {CL}
            s_cselect_b32 {sCnt}, 0, {sCnt}
            s_cselect_b32 {sP}, {CL}, 0
            s_add_u32 {sK}, {sK}, {sP}
            s_add_u32 {sLo}, {sLo}, {sP}
            s_add_u32 {sHi}, {sHi}, {sP}
            """)
    def wait(n): A.e(f"s_waitcnt vmcnt({min(63, n*per)})")
    A.e(f"s_mov_b32 {sSlot}, 0\ns_mov_b32 {sCnt}, 0\ns_mov_b32 {sLo}, 0\ns_mov_b32 {sHi}, {CL}")
    assert nst >= NS + 2
    for j in range(NS): issue()
    if hook: hook()
    issued = NS
    j = 0
    while j < lag:
        wait(issued - 1 - j); A.e("s_barrier"); j += 1
    nsteady = nst - NS
    lp = A.newlab(tag + "_ld")
    A.e(f"s_mov_b32 {sJ}, 0")
    A.lab(lp)
    wait(NS - 1 - lag); A.e("s_barrier"); issue()
    A.e(f"s_add_u32 {sJ}, {sJ}, 1\ns_cmp_lt_u32 {sJ}, {nsteady}\ns_cbranch_scc1 {lp}")
    j = lag + nsteady
    while j < nst:
        wait(nst - 1 - j); A.e("s_barrier"); j += 1
    A.e("s_barrier")

def consumer_full(A, tag, nst, NS, stage_bytes, bases, frags, nfreg, FB, mf, sSlot, sJ, mfma="v_mfma_f32_16x16x32_bf16", accw=4):
    def addr():
        for vc, vb in bases: A.e(f"v_add_u32 v{vc}, {sSlot}, v{vb}")
        A.e(f"s_add_u32 {sSlot}, {sSlot}, {stage_bytes}\ns_cmp_eq_u32 {sSlot}, {NS*stage_bytes}\ns_cselect_b32 {sSlot}, 0, {sSlot}")
    def reads(p):
        out = []
        for off, ins in frags:
            for (n, so, fmt) in ins:
                out.append(fmt.format(dst=vr(FB + p*nfreg + off + so, n)))
        return out
    def mfmas(p, first=False):
        out = []
        for acc, a, b in mf:
            c = "0" if first else vr(acc, accw)
            out.append(f"{mfma} {vr(acc,accw)}, {vr(FB+p*nfreg+a,4)}, {vr(FB+p*nfreg+b,4)}, {c}")
        return out
    def body(p, first=False):
        addr()
        r = reads(p); m = mfmas(1-p, first)
        i = 0
        for k, x in enumerate(m):
            if i < len(r): A.e(r[i]); i += 1
            A.e(x)
        while i < len(r): A.e(r[i]); i += 1
        A.e("s_waitcnt lgkmcnt(0)\ns_barrier")
    A.e(f"s_mov_b32 {sSlot}, 0")
    A.e("s_barrier")
    addr()
    for x in reads(0): A.e(x)
    A.e("s_waitcnt lgkmcnt(0)\ns_barrier")
    body(1, first=True)
    rem = nst - 2
    assert rem % 2 == 0
    lp = A.newlab(tag + "_cs")
    A.e(f"s_mov_b32 {sJ}, 0")
    A.lab(lp)
    body(0); body(1)
    A.e(f"s_add_u32 {sJ}, {sJ}, 1\ns_cmp_lt_u32 {sJ}, {rem//2}\ns_cbranch_scc1 {lp}")
    for x in mfmas(1): A.e(x)

def consumer_ring(A, tag, nst, NS, stage_bytes, bases, stat, nstat_reg, SB, strm, ring, RB, look, mf_of, sSlot, sJ,
                  pre_bar=None, post_bar=None, pre_bar0=None, addr_extra=None):
    n = len(strm); assert n % ring == 0 and look < ring
    q = []
    xq = []
    def addr():
        if addr_extra: A.e(addr_extra)
        for vc, vb in bases: A.e(f"v_add_u32 v{vc}, {sSlot}, v{vb}")
        A.e(f"s_add_u32 {sSlot}, {sSlot}, {stage_bytes}\ns_cmp_eq_u32 {sSlot}, {NS*stage_bytes}\ns_cselect_b32 {sSlot}, 0, {sSlot}")
    def rd_stat(p, tagid):
        out = []
        for off, ins in stat:
            for (nn, so, fmt) in ins: out.append((fmt.format(dst=vr(SB + p*nstat_reg + off + so, nn)), tagid))
        return out
    def rd_strm(j, tagid):
        return [(fmt.format(dst=vr(RB + (j % ring)*4 + so, nn)), tagid) for (nn, so, fmt) in strm[j]]
    def emit_reads(lst):
        for s, t in lst: A.e(s); q.append(t)
    def need(tags):
        last = -1
        for i, t in enumerate(q):
            if t in tags: last = i
        if last >= 0:
            rem = len(q) - 1 - last
            A.e(f"s_waitcnt lgkmcnt({min(15, rem)})")
            del q[:last+1]
    def stage(p, first=False, last=False):
        for j in range(n):
            pend = []
            jn = j + look
            if jn < n: pend = rd_strm(jn, ('c', jn))
            elif not last:
                if jn == n:
                    assert not xq
                    if pre_bar: A.e(pre_bar)
                    A.e("s_barrier"); addr()
                    if post_bar: xq.extend(post_bar())
                    pend = rd_stat(1-p, ('n', 's')) + rd_strm(0, ('n', 0))
                else: pend = rd_strm(jn - n, ('n', jn - n))
            elif jn == n:
                A.e("s_barrier")
            need({('c', j), ('c', 's')})
            ms = mf_of(j, SB + p*nstat_reg, RB + (j % ring)*4, first)
            k = 0
            per = (len(pend) + len(ms) - 1)//len(ms)
            for m in ms:
                A.e(m)
                emit_reads(pend[k:k+per]); k += per
            emit_reads(pend[k:])
            if xq:
                x = xq.pop(0)
                if not last: A.e(x)
        for i, t in enumerate(q):
            if t[0] == 'n': q[i] = ('c', t[1])
    A.e(f"s_mov_b32 {sSlot}, 0")
    if pre_bar0: A.e(pre_bar0)
    A.e("s_barrier"); addr()
    emit_reads(rd_stat(0, ('c', 's')))
    for j in range(look): emit_reads(rd_strm(j, ('c', j)))
    stage(0, first=True)
    q0 = list(q); x0 = list(xq)
    rem = nst - 2
    assert rem % 2 == 0
    lp = A.newlab(tag + "_cr")
    A.e(f"s_mov_b32 {sJ}, 0")
    A.lab(lp)
    stage(1); stage(0)
    assert q == q0, (q, q0)
    assert xq == x0
    A.e(f"s_add_u32 {sJ}, {sJ}, 1\ns_cmp_lt_u32 {sJ}, {rem//2}\ns_cbranch_scc1 {lp}")
    stage(1, last=True)
```

```python
from asm import *
from layout import *
import struct
def f2u(x): return struct.unpack("<I", struct.pack("<f", x))[0]

def reduce32(A, a, b):
    for n in (8,4,2,1):
        A.e(f"s_nop 1\nv_add_f32_dpp v{a}, v{a}, v{a} row_ror:{n} row_mask:0xf bank_mask:0xf")
    A.e(f"v_mov_b32 v{b}, v{a}\ns_nop 1\nv_permlane16_swap_b32 v{a}, v{b}\ns_nop 1\nv_add_f32 v{a}, v{a}, v{b}")

def layernorm(A, X, P, t0, t1, t2, t3, keep_f32):
    A.e(f"v_add_f32 v{t0}, v{X}, v{X+1}\nv_add_f32 v{t1}, v{X+2}, v{X+3}")
    for i in range(4,18,2):
        A.e(f"v_add_f32 v{t0}, v{t0}, v{X+i}\nv_add_f32 v{t1}, v{t1}, v{X+i+1}")
    A.e(f"v_add_f32 v{t0}, v{t0}, v{t1}")
    reduce32(A, t0, t1)
    A.e(f"v_mul_f32 v{t0}, {hex(f2u(1.0/576))}, v{t0}")
    A.e(f"v_sub_f32 v{t3}, v{X}, v{t0}\nv_mul_f32 v{t1}, v{t3}, v{t3}\nv_sub_f32 v{t3}, v{X+1}, v{t0}\nv_mul_f32 v{t2}, v{t3}, v{t3}")
    for i in range(2,18,2):
        A.e(f"v_sub_f32 v{t3}, v{X+i}, v{t0}\nv_fmac_f32 v{t1}, v{t3}, v{t3}\nv_sub_f32 v{t3}, v{X+i+1}, v{t0}\nv_fmac_f32 v{t2}, v{t3}, v{t3}")
    A.e(f"v_add_f32 v{t1}, v{t1}, v{t2}")
    reduce32(A, t1, t2)
    A.e(f"v_mul_f32 v{t1}, {hex(f2u(1.0/576))}, v{t1}")
    A.e(f"v_cvt_pk_bf16_f32 v{t2}, v{t0}, v{t1}")
    A.e(f"v_lshlrev_b32 v{t0}, 16, v{t2}\nv_and_b32 v{t1}, 0xffff0000, v{t2}")
    A.e(f"v_add_f32 v{t1}, {hex(f2u(1e-5))}, v{t1}")
    A.e(f"v_cvt_pk_bf16_f32 v{t1}, v{t1}, v{t1}\nv_and_b32 v{t1}, 0xffff0000, v{t1}")
    A.e(f"v_sqrt_f32 v{t1}, v{t1}\ns_nop 0")
    A.e(f"v_cvt_pk_bf16_f32 v{t1}, v{t1}, v{t1}\nv_and_b32 v{t1}, 0xffff0000, v{t1}")
    A.e(f"v_rcp_f32 v{t1}, v{t1}\ns_nop 0")
    for i in range(9):
        a, b = X+2*i, X+2*i+1
        A.e(f"v_sub_f32 v{a}, v{a}, v{t0}\nv_sub_f32 v{b}, v{b}, v{t0}")
        A.e(f"v_cvt_pk_bf16_f32 v{t2}, v{a}, v{b}")
        A.e(f"v_lshlrev_b32 v{a}, 16, v{t2}\nv_and_b32 v{b}, 0xffff0000, v{t2}")
        A.e(f"v_mul_f32 v{a}, v{a}, v{t1}\nv_mul_f32 v{b}, v{b}, v{t1}")
        A.e(f"v_cvt_pk_bf16_f32 v{P+i}, v{a}, v{b}")
        if keep_f32:
            A.e(f"v_lshlrev_b32 v{a}, 16, v{P+i}\nv_and_b32 v{b}, 0xffff0000, v{P+i}")

HSTR = 1216
def gen_k1(A, name, opt):
    kernel_head(A, name)
    done = A.newlab("k1done")
    A.e(f"""
    s_cmp_ge_u32 s2, 256
    s_cbranch_scc1 {done}
    s_load_dwordx2 s[4:5], s[0:1], {KA_X}
    s_load_dwordx2 s[6:7], s[0:1], {KA_WS}
    s_load_dwordx4 s[36:39], s[0:1], {KA_WQKV}
    s_load_dwordx2 s[40:41], s[0:1], {KA_W1}
    s_and_b32 s24, s2, 7
    s_lshr_b32 s25, s2, 3
    s_lshr_b32 s26, s25, 3
    s_lshl_b32 s26, s26, 3
    s_add_u32 s26, s26, s24
    s_and_b32 s27, s25, 7
    s_lshl_b32 s28, s26, 6
    s_lshl_b32 s29, s27, 3
    s_add_u32 s28, s28, s29
    v_and_b32 v1, 63, v0
    v_and_b32 v2, 31, v0
    v_lshrrev_b32 v3, 5, v0
    v_add_u32 v4, s28, v3
    v_mul_u32_u24 v5, 1152, v4
    v_lshl_add_u32 v5, v2, 2, v5
    s_waitcnt lgkmcnt(0)
    """)
    A.srd(8, 4, 5, SZ_X)
    for i in range(9):
        A.e(f"buffer_load_dword v{10+i}, v5, s[8:11], 0 offen offset:{128*i}")
    A.srd_off(12, 6, 7, WS_XN, SZ_X)
    A.srd_off(16, 6, 7, WS_HT, SZ_X)
    A.srd_off(20, 6, 7, WS_KV, SZ_KV)
    opt.get("k1_prefetch", lambda A: None)(A)
    A.e(f"""
    v_lshrrev_b32 v6, 7, v4
    v_mul_u32_u24 v6, {18*8192}, v6
    v_lshrrev_b32 v7, 4, v2
    v_lshl_add_u32 v6, v7, 13, v6
    v_and_b32 v7, 127, v4
    v_lshl_add_u32 v6, v7, 6, v6
    v_bfe_u32 v7, v4, 2, 2
    v_lshlrev_b32 v7, 1, v7
    v_lshrrev_b32 v7, v7, {FT}
    v_and_b32 v7, 3, v7
    v_bfe_u32 v8, v2, 1, 2
    v_xor_b32 v7, v7, v8
    v_lshl_add_u32 v6, v7, 4, v6
    v_and_b32 v7, 1, v2
    v_lshl_add_u32 v6, v7, 2, v6
    v_bfe_u32 v7, v2, 3, 1
    v_lshl_add_u32 v6, v7, 3, v6
    """.replace(f"v_lshrrev_b32 v7, v7, {FT}", f"v_mov_b32 v8, {FT}\nv_lshrrev_b32 v7, v7, v8"))
    A.e(f"v_mul_u32_u24 v9, {HSTR}, v3\nv_lshl_add_u32 v9, v2, 2, v9")
    A.e(f"""
    v_mov_b32 v40, 0
    v_mov_b32 v41, 0
    v_mov_b32 v42, 0
    v_mov_b32 v43, 0
    v_lshlrev_b32 v44, 4, v0
    v_mov_b32 v45, 0x7ffffff0
    v_cmp_gt_u32 vcc, 32, v0
    s_lshl_b32 s30, s2, 9
    s_nop 0
    v_cndmask_b32 v44, v45, v44, vcc
    buffer_store_dwordx4 v[40:43], v44, s[20:23], s30 offen
    """)
    npf = opt.get("k1_npf", 0)
    A.e(f"s_waitcnt vmcnt({min(63, 1+npf)})")
    for i in range(9):
        A.e(f"v_lshlrev_b32 v{20+2*i}, 16, v{10+i}\nv_and_b32 v{21+2*i}, 0xffff0000, v{10+i}")
    layernorm(A, 20, 10, 40, 41, 42, 43, True)
    for i in range(9):
        A.e(f"s_mov_b32 s30, {i*16384}\nbuffer_store_dword v{10+i}, v6, s[12:15], s30 offen")
    layernorm(A, 20, 46, 40, 41, 42, 43, False)
    for i in range(9):
        A.e(f"ds_write_b32 v9, v{46+i} offset:{128*i}")
    A.e(f"""
    v_bfe_u32 v7, v0, 2, 2
    v_mul_u32_u24 v7, {HSTR}, v7
    v_bfe_u32 v8, v0, 4, 2
    v_lshl_add_u32 v7, v8, 5, v7
    v_and_b32 v8, 3, v0
    v_lshl_add_u32 v7, v8, 3, v7
    v_lshrrev_b32 v8, 6, v0
    v_lshl_add_u32 v7, v8, 7, v7
    s_nop 0
    v_readfirstlane_b32 s31, v8
    s_mul_i32 s32, s26, 18432
    s_waitcnt lgkmcnt(0)
    s_barrier
    """)
    for r in range(3):
        skip = A.newlab("k1skip")
        if r == 2:
            A.e(f"s_cmp_lg_u32 s31, 0\ns_cbranch_scc1 {skip}")
        b = 20 + 4*r
        A.e(f"ds_read_b64_tr_b16 v[{b}:{b+1}], v7 offset:{512*r}\nds_read_b64_tr_b16 v[{b+2}:{b+3}], v7 offset:{512*r+4*HSTR}")
        A.e(f"v_add_u32 v40, {256*r}, v0")
        A.vdiv("v41", "v40", 144, "s30")
        A.e(f"""
        v_mul_u32_u24 v42, 144, v41
        v_sub_u32 v42, v40, v42
        v_mul_u32_u24 v41, {32*18432}, v41
        v_lshl_add_u32 v41, v42, 7, v41
        v_bfe_u32 v42, v42, 1, 3
        v_xor_b32 v42, s27, v42
        v_lshl_add_u32 v41, v42, 4, v41
        s_waitcnt lgkmcnt(0)
        buffer_store_dwordx4 v[{b}:{b+3}], v41, s[16:19], s32 offen
        """)
        if r == 2: A.lab(skip)
    A.lab(done)
    A.e("s_endpgm")
    kernel_desc(A, name, 64, 48)
    return f"; @launch kernel={name} grid=(256,1,1) block=(256,1,1) lds={8*HSTR}"
```

```python
from asm import *
from layout import *
from core import *
from k1 import f2u
import math

LR = dict(K="s40", Cnt="s41", Lo="s42", Hi="s43", Slot="s44", P="s45", W="s46", J="s47", bP="s48", bW="s49")

def gelu8(A, X, T, sk1, sk2):
    for i in range(8): A.e(f"v_mul_f32 v{T+i}, v{X+i}, v{X+i}")
    for i in range(8): A.e(f"v_fma_f32 v{T+i}, v{T+i}, {sk2}, v{T+8}")
    for i in range(8): A.e(f"v_mul_f32 v{T+i}, v{T+i}, v{X+i}")
    for i in range(8): A.e(f"v_exp_f32 v{T+i}, v{T+i}")
    for i in range(8): A.e(f"v_add_f32 v{T+i}, 1.0, v{T+i}")
    for i in range(8): A.e(f"v_rcp_f32 v{T+i}, v{T+i}")
    A.e("s_nop 0")
    for i in range(8): A.e(f"v_mul_f32 v{X+i}, v{X+i}, v{T+i}")

G1_PB = 144*128; G1_WB = 64*192; G1_ST = G1_PB + G1_WB; G1_NS = 4

def gemm1(A, opt, done):
    A.e(f"""
    s_lshr_b32 s31, s29, 2
    s_mul_i32 s32, s28, 6
    s_add_u32 s31, s31, s32
    s_and_b32 s32, s29, 3
    """)
    A.srd_off(12, 4, 5, WS_HT, SZ_X)
    A.srd(16, 6, 7, SZ_W1)
    A.srd_off(20, 4, 5, WS_U, SZ_U)
    A.srd(24, 8, 9, SZ_B1)
    A.e("v_lshrrev_b32 v2, 4, v1\nv_lshlrev_b32 v2, 3, v2")
    for r in range(4):
        A.e(f"s_add_u32 s33, s30, {8*r}")
        A.sdiv("s34", "s33", 9, "s35")
        A.e(f"s_mul_i32 s35, s31, 192\ns_lshl_b32 s34, s34, 6\ns_add_u32 s34, s34, s35")
        A.e(f"buffer_load_dwordx2 v[{240+4*r}:{241+4*r}], v2, s[24:27], s34 offen")
        A.e(f"buffer_load_dwordx2 v[{242+4*r}:{243+4*r}], v2, s[24:27], s34 offen offset:32")
    epi = A.newlab("g1epi"); cons = A.newlab("g1cons")
    A.e(f"s_cmp_lt_u32 s30, 4\ns_cbranch_scc1 {cons}")
    CL = opt.get("g1_cl", 32); nseg = opt.get("g1_nseg", 1)
    A.e(f"s_mul_i32 {LR['bP']}, s32, {32*G1_PB}\ns_mul_i32 {LR['bW']}, s31, 192")
    if nseg > 1:
        A.e(f"s_lshr_b32 s33, s29, 2\ns_add_u32 s33, s33, s32\ns_and_b32 s33, s33, {nseg-1}\ns_mul_i32 {LR['K']}, s33, {CL//nseg}")
    else: A.e(f"s_mov_b32 {LR['K']}, 0")
    A.e("s_waitcnt vmcnt(0)")
    pst = [0, 5, 10, 14, 18]
    labs = [A.newlab(f"g1ld{w}") for w in range(4)]
    for w in range(1, 4): A.e(f"s_cmp_eq_u32 s30, {4+w}\ns_cbranch_scc1 {labs[w]}")
    flP = opt.get("g1_flP", ""); flW = opt.get("g1_flW", "")
    for w in range(4):
        A.lab(labs[w])
        A.e(f"v_lshlrev_b32 v10, 4, v1\nv_add_u32 v10, {pst[w]*1024}, v10\nv_add_u32 v11, 4096, v10")
        runs = []
        npi = pst[w+1] - pst[w]
        runs.append((G1_PB + 3*w*1024, [(12+t, "s[16:19]", 'W', t*1024, flW) for t in range(3)]))
        runs.append((pst[w]*1024, [(10, "s[12:15]", 'P', t*1024, flP) for t in range(4)]))
        if npi == 5: runs.append((pst[w]*1024 + 4096, [(11, "s[12:15]", 'P', 0, flP)]))
        for t in range(3):
            A.e(f"v_add_u32 v3, {(3*w+t)*64}, v1")
            A.vdiv("v4", "v3", 12, "s33")
            A.e(f"""
            v_mul_u32_u24 v5, 12, v4
            v_sub_u32 v5, v3, v5
            v_bfe_u32 v6, v4, 3, 1
            v_lshlrev_b32 v6, 1, v6
            v_xor_b32 v5, v5, v6
            v_mul_u32_u24 v4, 9216, v4
            v_lshl_add_u32 v4, v5, 4, v4
            v_subrev_u32 v{12+t}, {t*1024}, v4
            """)
        loader(A, f"g1w{w}", runs, 32, G1_NS, G1_ST, 1, G1_PB, 64*9216, CL, LR)
        A.e(f"s_branch {epi}")
    A.lab(cons)
    A.e(f"""
    s_and_b32 s33, s30, 1
    s_lshr_b32 s34, s30, 1
    v_and_b32 v2, 15, v1
    v_lshrrev_b32 v3, 4, v1
    s_lshl_b32 s35, s33, 2
    v_add_u32 v4, s35, v3
    v_lshrrev_b32 v5, 1, v2
    v_xor_b32 v4, v4, v5
    v_lshlrev_b32 v4, 4, v4
    v_lshl_add_u32 v10, v2, 7, v4
    s_lshl_b32 s35, s33, 5
    v_lshlrev_b32 v4, 3, v3
    v_add_u32 v4, s35, v4
    v_lshrrev_b32 v5, 2, v2
    v_add_u32 v4, v4, v5
    v_mul_u32_u24 v4, 192, v4
    v_and_b32 v5, 3, v2
    v_lshl_add_u32 v4, v5, 3, v4
    s_mul_i32 s35, s34, 96
    s_add_u32 s35, s35, {G1_PB}
    v_add_u32 v4, s35, v4
    v_and_b32 v5, 1, v3
    v_lshlrev_b32 v5, 5, v5
    v_add_u32 v11, v4, v5
    v_sub_u32 v12, v4, v5
    s_cmp_eq_u32 s34, 0
    s_cbranch_scc1 L_g1noswap
    v_swap_b32 v11, v12
    L_g1noswap:
    """)
    ACC = 16; FB = 128; NF = 48
    frags = []
    for mt in range(3):
        va = 14 if mt != 1 else 15
        frags.append((mt*4, [(2, 0, f"ds_read_b64_tr_b16 {{dst}}, v{va} offset:{mt*32}"),
                             (2, 2, f"ds_read_b64_tr_b16 {{dst}}, v{va} offset:{mt*32+768}")]))
    for nt in range(9):
        frags.append((12+nt*4, [(4, 0, f"ds_read_b128 {{dst}}, v13 offset:{nt*2048}")]))
    mf = [(ACC + (mt*9+nt)*4, mt*4, 12+nt*4) for nt in range(9) for mt in range(3)]
    consumer_full(A, "g1", 32, G1_NS, G1_ST, [(13,10),(14,11),(15,12)], frags, NF, FB, mf, "s44", "s47")
    A.e(f"""
    s_mul_i32 s35, s33, 55296
    s_mul_i32 s36, s34, 27648
    s_add_u32 s35, s35, s36
    v_lshlrev_b32 v2, 4, v1
    v_add_u32 v2, s35, v2
    s_nop 7
    """)
    for t in range(27):
        A.e(f"ds_write_b128 v2, {vr(ACC+4*t,4)} offset:{t*1024}")
    A.e("s_waitcnt lgkmcnt(0)")
    A.lab(epi)
    k1 = -2.0*math.sqrt(2.0/math.pi)*math.log2(math.e); k2 = k1*0.044715
    A.e(f"""
    s_barrier
    v_and_b32 v2, 15, v1
    v_lshrrev_b32 v3, 4, v1
    v_lshrrev_b32 v5, 1, v2
    v_xor_b32 v4, v3, v5
    v_lshlrev_b32 v4, 4, v4
    v_lshl_add_u32 v4, v2, 7, v4
    v_lshlrev_b32 v5, 4, v1
    s_mov_b32 s50, {hex(f2u(k2))}
    v_mov_b32 v48, {hex(f2u(k1))}
    s_waitcnt vmcnt(0)
    """)
    for r in range(4):
        if r == 3: A.e(f"s_cmp_ge_u32 s30, 3\ns_cbranch_scc1 {done}")
        A.e(f"s_add_u32 s33, s30, {8*r}")
        A.sdiv("s34", "s33", 9, "s35")
        A.e(f"""
        s_mul_i32 s35, s34, 9
        s_sub_u32 s35, s33, s35
        s_mul_i32 s36, s34, 18432
        s_lshl_b32 s37, s35, 10
        s_add_u32 s36, s36, s37
        v_add_u32 v6, s36, v5
        ds_read_b128 v[16:19], v6
        ds_read_b128 v[20:23], v6 offset:9216
        ds_read_b128 v[24:27], v6 offset:55296
        ds_read_b128 v[28:31], v6 offset:64512
        s_mul_i32 s36, s32, 9
        s_add_u32 s36, s36, s35
        """)
        A.sdiv("s37", "s36", 6, "s38")
        A.e(f"""
        s_mul_i32 s38, s37, 6
        s_sub_u32 s38, s36, s38
        s_mul_i32 s37, s37, {72*12288}
        s_lshl_b32 s38, s38, 11
        s_add_u32 s37, s37, s38
        s_mul_i32 s38, s31, 3
        s_add_u32 s38, s38, s34
        s_lshr_b32 s39, s38, 1
        s_mul_i32 s39, s39, 12288
        s_add_u32 s37, s37, s39
        s_and_b32 s38, s38, 1
        s_lshl_b32 s38, s38, 6
        v_xor_b32 v7, s38, v4
        """)
        b = 240 + 4*r
        for i in range(4):
            A.e(f"v_lshlrev_b32 v{32+2*i}, 16, v{b+i}\nv_and_b32 v{33+2*i}, 0xffff0000, v{b+i}")
        A.e("s_waitcnt lgkmcnt(0)")
        for i in range(8): A.e(f"v_add_f32 v{16+i}, v{16+i}, v{24+i}")
        if opt.get("round_u", False):
            for i in range(4):
                A.e(f"v_cvt_pk_bf16_f32 v24, v{16+2*i}, v{17+2*i}\nv_lshlrev_b32 v{16+2*i}, 16, v24\nv_and_b32 v{17+2*i}, 0xffff0000, v24")
        for i in range(8): A.e(f"v_add_f32 v{16+i}, v{16+i}, v{32+i}")
        if opt.get("round_u", False):
            for i in range(4):
                A.e(f"v_cvt_pk_bf16_f32 v24, v{16+2*i}, v{17+2*i}\nv_lshlrev_b32 v{16+2*i}, 16, v24\nv_and_b32 v{17+2*i}, 0xffff0000, v24")
        gelu8(A, 16, 40, None, "s50")
        o = 52 + 4*r
        for i in range(4): A.e(f"v_cvt_pk_bf16_f32 v{o+i}, v{16+2*i}, v{17+2*i}")
        A.e(f"buffer_store_dwordx4 v[{o}:{o+3}], v7, s[20:23], s37 offen")
    A.e(f"s_branch {done}")

def gen_k2(A, name, opt):
    from k2b import qkv, QK_LDS
    kernel_head(A, name)
    done = A.newlab("k2done"); lq = A.newlab("k2qkv")
    A.e(f"""
    s_cmp_ge_u32 s2, 256
    s_cbranch_scc1 {done}
    s_load_dwordx2 s[4:5], s[0:1], {KA_WS}
    s_load_dwordx4 s[6:9], s[0:1], {KA_W1}
    s_load_dwordx2 s[10:11], s[0:1], {KA_WQKV}
    s_and_b32 s28, s2, 7
    s_lshr_b32 s29, s2, 3
    v_lshrrev_b32 v2, 6, v0
    v_and_b32 v1, 63, v0
    v_readfirstlane_b32 s30, v2
    s_waitcnt lgkmcnt(0)
    s_cmp_ge_u32 s29, 24
    s_cbranch_scc1 {lq}
    """.replace("s_load_dwordx4 s[6:9], s[0:1], %d" % KA_W1, "s_load_dwordx2 s[6:7], s[0:1], %d\ns_load_dwordx2 s[8:9], s[0:1], %d" % (KA_W1, KA_B1)))
    gemm1(A, opt, done)
    A.lab(lq)
    qkv(A, opt, done)
    A.lab(done)
    A.e("s_endpgm")
    kernel_desc(A, name, 256, 102)
    return f"; @launch kernel={name} grid=(256,1,1) block=(512,1,1) lds={max(G1_NS*G1_ST, QK_LDS)}"
```

```python
from asm import *
from layout import *
from core import *
from k1 import f2u
import math
QK_PB = 8192; QK_WB = 27648; QK_ST = QK_PB + QK_WB; QK_NS = 4; QK_LDS = QK_NS*QK_ST
LOG2E = math.log2(math.e)

def phi_pack(A, src, dst, t, opt):
    n = len(src)
    if opt.get("round_q", True):
        for i in range(0, n, 2):
            A.e(f"v_cvt_pk_bf16_f32 v{t}, v{src[i]}, v{src[i+1]}\nv_lshlrev_b32 v{src[i]}, 16, v{t}\nv_and_b32 v{src[i+1]}, 0xffff0000, v{t}")
    for i in range(n): A.e(f"v_mul_f32 v{t+i}, s50, v{src[i]}")
    for i in range(n): A.e(f"v_min_f32 v{t+i}, 0, v{t+i}")
    for i in range(n): A.e(f"v_exp_f32 v{t+i}, v{t+i}")
    for i in range(n): A.e(f"v_max_f32 v{src[i]}, s51, v{src[i]}")
    for i in range(n): A.e(f"v_add_f32 v{src[i]}, v{src[i]}, v{t+i}")
    for i in range(0, n, 2): A.e(f"v_cvt_pk_bf16_f32 v{dst[i//2]}, v{src[i]}, v{src[i+1]}")

def qkv(A, opt, done):
    A.e(f"""
    s_lshr_b32 s31, s28, 1
    s_and_b32 s32, s28, 1
    s_lshl_b32 s32, s32, 3
    s_add_u32 s32, s32, s29
    s_sub_u32 s32, s32, 24
    s_mov_b32 s50, {hex(f2u(LOG2E))}
    s_mov_b32 s51, {hex(f2u(1e-6))}
    s_and_b32 s33, s30, 3
    """)
    A.srd_off(12, 4, 5, WS_XN, SZ_X)
    A.srd(16, 10, 11, SZ_WQKV)
    A.srd_off(20, 4, 5, WS_PQ, SZ_X)
    A.srd_off(24, 4, 5, WS_KV, SZ_KV)
    A.e(f"""
    v_and_b32 v2, 15, v1
    v_lshrrev_b32 v3, 4, v1
    v_lshrrev_b32 v4, 2, v2
    v_lshlrev_b32 v5, 1, v4
    v_mov_b32 v6, {FT}
    v_lshrrev_b32 v5, v5, v6
    v_and_b32 v5, 3, v5
    v_xor_b32 v5, v5, v3
    v_lshlrev_b32 v5, 4, v5
    v_lshl_add_u32 v10, v2, 6, v5
    s_lshl_b32 s34, s33, 11
    v_add_u32 v10, s34, v10
    v_lshl_add_u32 v4, v3, 2, v4
    v_mul_u32_u24 v4, 288, v4
    v_and_b32 v5, 3, v2
    v_lshl_add_u32 v4, v5, 3, v4
    v_add_u32 v11, {QK_PB}, v4
    """)
    lq = A.newlab("qw"); gather = A.newlab("qgather")
    A.e(f"s_cmp_ge_u32 s30, 4\ns_cbranch_scc1 {lq}")
    stat = [(mt*4, [(4, 0, f"ds_read_b128 {{dst}}, v13 offset:{mt*1024}")]) for mt in range(2)]
    def wfrag(sg, t):
        return [(2, 0, f"ds_read_b64_tr_b16 {{dst}}, v14 offset:{sg*9216+t*32}"),
                (2, 2, f"ds_read_b64_tr_b16 {{dst}}, v14 offset:{sg*9216+t*32+4608}")]
    M = "v_mfma_f32_16x16x32_bf16"
    ACC = 16; SB = 160; RB = 176
    def mf_kv(j, sb, rb, first):
        return [f"{M} {vr(ACC+(j*2+mt)*4,4)}, {vr(sb+mt*4,4)}, {vr(rb,4)}, {'0' if first else vr(ACC+(j*2+mt)*4,4)}" for mt in range(2)]
    consumer_ring(A, "kv", 18, QK_NS, QK_ST, [(13,10),(14,11)], stat, 8, SB, [wfrag(1,t) for t in range(9)] + [wfrag(2,t) for t in range(9)],
                  9, RB, 5, mf_kv, "s44", "s47")
    A.e("s_nop 7")
    PK = 160; VV = 196
    for t in range(9):
        src = [ACC + t*8 + i for i in range(8)]
        phi_pack(A, src, [PK+t*4+i for i in range(4)], 232, opt)
    for t in range(9):
        for i in range(4):
            a = ACC + (9+t)*8 + 2*i
            A.e(f"v_cvt_pk_bf16_f32 v{VV+t*4+i}, v{a}, v{a+1}")
    for i in range(4): A.e(f"v_mov_b32 v{232+i}, 0x3f803f80")
    A.e("s_nop 1")
    pairs = []
    for tk in range(9):
        for tv in (tk-1, tk, tk+1):
            if 0 <= tv < 9: pairs.append((2*tk+tv, tk, tv))
    for p, tk, tv in pairs:
        A.e(f"{M} {vr(ACC+p*4,4)}, {vr(PK+tk*4,4)}, {vr(VV+tv*4,4)}, 0")
    for tk in range(9):
        A.e(f"{M} {vr(ACC+(25+tk)*4,4)}, {vr(PK+tk*4,4)}, v[232:235], 0")
    A.e(f"""
    s_mul_i32 s34, s33, {34*1024}
    v_lshlrev_b32 v2, 4, v1
    v_add_u32 v2, s34, v2
    s_barrier
    s_nop 7
    """)
    for p in range(34): A.e(f"ds_write_b128 v2, {vr(ACC+p*4,4)} offset:{p*1024}")
    A.e(f"s_waitcnt lgkmcnt(0)\ns_branch {gather}")
    A.lab(lq)
    A.e(f"""
    v_lshlrev_b32 v20, 4, v1
    s_lshl_b32 s34, s33, 11
    v_add_u32 v20, s34, v20
    s_mul_i32 s52, s33, 7
    """)
    for t in range(7):
        A.e(f"s_add_u32 s35, s52, {t}\ns_min_u32 s35, s35, 26")
        A.sdiv("s36", "s35", 9, "s37")
        A.e(f"""
        s_mul_i32 s37, s36, 9
        s_sub_u32 s37, s35, s37
        s_lshl_b32 s37, s37, 6
        v_add_u32 v3, s37, v1
        """)
        A.vdiv("v4", "v3", 18, "s37")
        A.e(f"""
        v_mul_u32_u24 v5, 18, v4
        v_sub_u32 v5, v3, v5
        v_mul_u32_u24 v4, 3456, v4
        v_lshl_add_u32 v4, v5, 4, v4
        s_mul_i32 s36, s36, 1152
        v_add_u32 v{21+t}, s36, v4
        """)
    A.e(f"""
    s_lshl_b32 s53, s33, 11
    s_lshl_b32 s54, s52, 10
    s_add_u32 s54, s54, {QK_PB}
    s_lshl_b32 s55, s35, 10
    s_add_u32 s55, s55, {QK_PB}
    s_mul_i32 s45, s32, {18*8192}
    s_mul_i32 s46, s31, 288
    s_mov_b32 s40, 0
    s_mov_b32 s41, 0
    """)
    flP = opt.get("qk_flP", ""); flW = opt.get("qk_flW", "")
    def dma_groups():
        g = []
        g.append(f"s_add_u32 m0, s41, s53\ns_add_u32 s42, s41, s54\nbuffer_load_dwordx4 v20, s[12:15], s45 offen{flP} lds")
        g.append(f"buffer_load_dwordx4 v20, s[12:15], s45 offen offset:1024{flP} lds")
        for t in range(6):
            g.append(f"s_add_u32 m0, s42, {t*1024}\ns_nop 0\nbuffer_load_dwordx4 v{21+t}, s[16:19], s46 offen{flW} lds")
        g.append(f"""s_add_u32 m0, s41, s55
        s_add_u32 s40, s40, 1
        buffer_load_dwordx4 v27, s[16:19], s46 offen{flW} lds
        s_add_u32 s41, s41, {QK_ST}
        s_cmp_eq_u32 s41, {QK_NS*QK_ST}
        s_cselect_b32 s41, 0, s41
        s_add_u32 s45, s45, 8192
        s_add_u32 s46, s46, {32*3456}
        s_cmp_ge_u32 s40, 18
        s_cselect_b32 s45, 0x7ff00000, s45
        s_cselect_b32 s46, 0x7ff00000, s46""")
        return g
    for j in range(3):
        for x in dma_groups(): A.e(x)
    QACC = 32; QSB = 104; QRB = 120
    def mf_q(j, sb, rb, first):
        return [f"{M} {vr(QACC+(j*2+nt)*4,4)}, {vr(rb,4)}, {vr(sb+nt*4,4)}, {'0' if first else vr(QACC+(j*2+nt)*4,4)}" for nt in range(2)]
    consumer_ring(A, "q", 18, QK_NS, QK_ST, [(13,10),(14,11)], stat, 8, QSB, [wfrag(0,t) for t in range(9)],
                  9, QRB, 5, mf_q, "s44", "s47", pre_bar="s_waitcnt vmcnt(9)", post_bar=dma_groups, pre_bar0="s_waitcnt vmcnt(18)")
    A.e(f"""
    s_waitcnt vmcnt(0)
    s_barrier
    v_and_b32 v2, 15, v1
    v_lshrrev_b32 v3, 4, v1
    v_mul_u32_u24 v2, 1152, v2
    v_lshl_add_u32 v2, v3, 3, v2
    v_add_u32 v3, {16*1152}, v2
    s_lshl_b32 s34, s32, 7
    s_lshl_b32 s35, s33, 5
    s_add_u32 s34, s34, s35
    s_mul_i32 s34, s34, 1152
    s_mul_i32 s35, s31, 288
    s_add_u32 s34, s34, s35
    """)
    for t in range(9):
        src = [QACC + t*8 + i for i in range(8)]
        d = 160 + t*4
        phi_pack(A, src, [d+i for i in range(4)], 232, opt)
        A.e(f"buffer_store_dwordx2 v[{d}:{d+1}], v2, s[20:23], s34 offen offset:{t*32}")
        A.e(f"buffer_store_dwordx2 v[{d+2}:{d+3}], v3, s[20:23], s34 offen offset:{t*32}")
    A.lab(gather)
    A.e("s_barrier")
    A.e(f"s_lshl_b32 s34, s31, 15\nv_mov_b32 v30, 0x7ffffff0")
    for r in range(6):
        A.e(f"v_add_u32 v2, {512*r}, v0")
        A.vdiv("v3", "v2", 342, "s35")
        A.e(f"v_mul_u32_u24 v4, 342, v3\nv_sub_u32 v4, v2, v4")
        A.vdiv("v5", "v4", 18, "s35")
        A.e(f"""
        v_mul_u32_u24 v6, 18, v5
        v_sub_u32 v6, v4, v6
        v_mul_u32_u24 v7, 18, v3
        v_add_u32 v8, v7, v6
        v_add_u32 v9, v7, v5
        v_lshrrev_b32 v15, 4, v8
        v_lshrrev_b32 v16, 4, v9
        v_lshl_add_u32 v16, v15, 1, v16
        v_add_u32 v15, 25, v15
        v_and_b32 v9, 15, v9
        v_cmp_eq_u32 vcc, 18, v5
        v_bfe_u32 v17, v8, 2, 2
        v_and_b32 v18, 3, v8
        v_cndmask_b32 v16, v16, v15, vcc
        v_cndmask_b32 v9, v9, 0, vcc
        v_lshlrev_b32 v16, 10, v16
        v_lshl_add_u32 v16, v17, 8, v16
        v_lshl_add_u32 v16, v9, 4, v16
        v_lshl_add_u32 v16, v18, 2, v16
        v_min_u32 v16, {34*1024-4}, v16
        v_add_u32 v17, {2*34*1024}, v16
        ds_read_b32 v20, v16
        ds_read_b32 v21, v16 offset:{34*1024}
        ds_read_b32 v22, v17
        ds_read_b32 v23, v17 offset:{34*1024}
        v_lshlrev_b32 v24, 12, v3
        v_lshl_add_u32 v24, v5, 7, v24
        v_lshl_add_u32 v24, v6, 2, v24
        v_add_u32 v25, 256, v24
        v_cndmask_b32 v25, v30, v25, vcc
        v_cmp_gt_u32 vcc, 2736, v2
        s_nop 1
        v_cndmask_b32 v24, v30, v24, vcc
        v_cndmask_b32 v25, v30, v25, vcc
        s_waitcnt lgkmcnt(0)
        v_add_f32 v20, v20, v21
        v_add_f32 v22, v22, v23
        v_add_f32 v{32+r}, v20, v22
        buffer_atomic_add_f32 v{32+r}, v24, s[24:27], s34 offen
        buffer_atomic_add_f32 v{32+r}, v25, s[24:27], s34 offen
        """.replace("v_cndmask_b32 v9, v9, 0, vcc", "v_cndmask_b32_e64 v9, v9, 0, vcc"))
    A.e(f"s_branch {done}")
```

```python
from asm import *
from layout import *
from core import *
from k1 import f2u
from k2 import LR
M16 = "v_mfma_f32_16x16x32_bf16"
G2_PB = 2*12288; G2_WB = 128*128; G2_ST = G2_PB + G2_WB; G2_NS = 3
OSTR = 1168; OT = 64*OSTR; AT_ST = 32*576; AT_NS = 4; AT_LDS = OT + AT_NS*AT_ST

def gemm2(A, opt, done):
    A.e("s_sub_u32 s33, s29, 8")
    A.sdiv("s31", "s33", 6, "s34")
    A.e(f"""
    s_mul_i32 s34, s31, 6
    s_sub_u32 s32, s33, s34
    s_mov_b32 s56, s31
    s_lshl_b32 s34, s28, 2
    s_add_u32 s31, s31, s34
    """)
    A.srd_off(12, 4, 5, WS_U, SZ_U)
    A.srd(16, 6, 7, SZ_W2)
    A.srd(20, 52, 53, SZ_X)
    A.srd_off(24, 4, 5, WS_AP, SZ_X)
    A.srd(60, 8, 9, SZ_B2)
    A.srd(64, 54, 55, 256)
    epi = A.newlab("g2epi"); cons = A.newlab("g2cons")
    A.e(f"s_cmp_lt_u32 s30, 4\ns_cbranch_scc1 {cons}")
    CL = opt.get("g2_cl", 36); nseg = opt.get("g2_nseg", 1)
    A.e(f"s_mul_i32 {LR['bP']}, s32, {72*12288}\ns_lshl_b32 {LR['bW']}, s31, 7")
    if nseg > 1:
        A.e(f"s_add_u32 s33, s56, s32")
        A.sdiv("s34", "s33", nseg, "s35")
        A.e(f"s_mul_i32 s34, s34, {nseg}\ns_sub_u32 s33, s33, s34\ns_mul_i32 {LR['K']}, s33, {CL//nseg}")
    else: A.e(f"s_mov_b32 {LR['K']}, 0")
    flP = opt.get("g2_flP", ""); flW = opt.get("g2_flW", "")
    A.e(f"""
    s_sub_u32 s33, s30, 4
    s_mul_i32 s34, s33, 6144
    v_lshlrev_b32 v10, 4, v1
    v_add_u32 v10, s34, v10
    v_add_u32 v11, 4096, v10
    v_lshrrev_b32 v3, 3, v1
    v_and_b32 v4, 7, v1
    v_bfe_u32 v5, v1, 4, 2
    v_lshlrev_b32 v5, 1, v5
    v_xor_b32 v4, v4, v5
    v_lshlrev_b32 v3, 12, v3
    v_lshl_add_u32 v3, v4, 4, v3
    s_lshl_b32 s35, s33, 17
    v_add_u32 v12, s35, v3
    v_add_u32 v13, {32768-1024}, v12
    v_add_u32 v14, {2*32768-2048}, v12
    v_add_u32 v15, {3*32768-3072}, v12
    """)
    labs = [A.newlab(f"g2ld{w}") for w in range(4)]
    for w in range(1, 4): A.e(f"s_cmp_eq_u32 s30, {4+w}\ns_cbranch_scc1 {labs[w]}")
    for w in range(4):
        A.lab(labs[w])
        runs = [(G2_PB + 4096*w, [(12+t, "s[16:19]", 'W', t*1024, flW) for t in range(4)]),
                (6144*w, [(10, "s[12:15]", 'P', t*1024, flP) for t in range(4)]),
                (6144*w + 4096, [(11, "s[12:15]", 'P', t*1024, flP) for t in range(2)])]
        loader(A, f"g2w{w}", runs, 36, G2_NS, G2_ST, 1, G2_PB, 128*4096, CL, LR)
        if w == 0:
            pl = A.newlab("g2poll")
            A.e(f"""
            s_lshl_b32 s33, s31, 1
            s_cmp_ge_u32 s32, 3
            s_addc_u32 s33, s33, 0
            s_lshl_b32 s33, s33, 2
            v_mov_b32 v3, s33
            s_mov_b32 s35, 0
            {pl}:
            buffer_load_dword v4, v3, s[64:67], 0 offen sc1
            s_waitcnt vmcnt(0)
            v_readfirstlane_b32 s34, v4
            s_add_u32 s35, s35, 1
            s_cmp_lg_u32 s34, 0
            s_cbranch_scc1 {epi}
            s_cmp_gt_u32 s35, 400000
            s_cbranch_scc1 {epi}
            s_sleep 2
            s_branch {pl}
            """)
        else:
            A.e(f"s_branch {epi}")
    A.lab(cons)
    A.e(f"""
    s_and_b32 s33, s30, 1
    s_lshr_b32 s34, s30, 1
    v_and_b32 v2, 15, v1
    v_lshrrev_b32 v3, 4, v1
    s_lshl_b32 s35, s33, 2
    v_add_u32 v4, s35, v3
    v_lshrrev_b32 v5, 1, v2
    v_xor_b32 v4, v4, v5
    v_lshlrev_b32 v4, 4, v4
    v_lshl_add_u32 v4, v2, 7, v4
    s_mul_i32 s35, s34, 12288
    v_add_u32 v6, s35, v4
    v_lshrrev_b32 v5, 2, v2
    v_lshl_add_u32 v4, v3, 2, v5
    v_bfe_u32 v5, v4, 1, 2
    v_lshlrev_b32 v4, 7, v4
    v_lshl_add_u32 v4, v5, 5, v4
    v_and_b32 v5, 3, v2
    v_lshl_add_u32 v4, v5, 3, v4
    s_lshl_b32 s35, s30, 12
    s_add_u32 s35, s35, {G2_PB}
    v_add_u32 v7, s35, v4
    v_xor_b32 v8, 32, v7
    v_xor_b32 v9, 64, v7
    v_xor_b32 v10, 96, v7
    """)
    ACC = 16; FB = 112; NF = 40
    frags = []
    for nt in range(4):
        frags.append((24+nt*4, [(2, 0, f"ds_read_b64_tr_b16 {{dst}}, v{12+nt}"),
                                (2, 2, f"ds_read_b64_tr_b16 {{dst}}, v{12+nt} offset:2048")]))
    for mt in range(6):
        frags.append((mt*4, [(4, 0, f"ds_read_b128 {{dst}}, v11 offset:{mt*2048}")]))
    mf = [(ACC + (mt*4+nt)*4, mt*4, 24+nt*4) for mt in range(6) for nt in range(4)]
    consumer_full(A, "g2", 36, G2_NS, G2_ST, [(11,6),(12,7),(13,8),(14,9),(15,10)], frags, NF, FB, mf, "s44", "s47")
    A.e(f"""
    s_mul_i32 s35, s30, 24576
    v_lshlrev_b32 v2, 4, v1
    v_add_u32 v2, s35, v2
    s_nop 7
    """)
    for t in range(24): A.e(f"ds_write_b128 v2, {vr(ACC+4*t,4)} offset:{t*1024}")
    A.e("s_waitcnt lgkmcnt(0)")
    A.lab(epi)
    A.e(f"""
    s_barrier
    s_mul_i32 s34, s31, {64*1152}
    s_mul_i32 s35, s32, 192
    s_add_u32 s34, s34, s35
    s_lshl_b32 s35, s31, 7
    """)
    for r in range(2):
        if r == 1: A.e(f"s_cmp_ge_u32 s30, 4\ns_cbranch_scc1 {done}")
        A.e(f"v_add_u32 v2, {512*r}, v0")
        A.vdiv("v3", "v2", 12, "s36")
        A.e(f"""
        v_mul_u32_u24 v4, 12, v3
        v_sub_u32 v4, v2, v4
        v_mul_u32_u24 v5, 1152, v3
        v_lshl_add_u32 v5, v4, 4, v5
        v_lshlrev_b32 v6, 1, v3
        buffer_load_dwordx4 v[56:59], v5, s[24:27], s34 offen sc1
        buffer_load_ushort v60, v6, s[60:63], s35 offen
        v_lshrrev_b32 v7, 1, v4
        v_lshlrev_b32 v7, 12, v7
        v_lshrrev_b32 v8, 4, v3
        v_lshl_add_u32 v7, v8, 10, v7
        v_and_b32 v8, 1, v4
        v_lshl_add_u32 v7, v8, 9, v7
        v_and_b32 v8, 15, v3
        v_lshl_add_u32 v7, v8, 4, v7
        v_add_u32 v8, 49152, v7
        ds_read_b128 v[16:19], v7
        ds_read_b128 v[20:23], v7 offset:256
        ds_read_b128 v[24:27], v7 offset:24576
        ds_read_b128 v[28:31], v7 offset:24832
        ds_read_b128 v[32:35], v8
        ds_read_b128 v[36:39], v8 offset:256
        ds_read_b128 v[40:43], v8 offset:24576
        ds_read_b128 v[44:47], v8 offset:24832
        s_waitcnt lgkmcnt(4)
        """)
        for i in range(8): A.e(f"v_add_f32 v{16+i}, v{16+i}, v{24+i}")
        A.e("s_waitcnt lgkmcnt(0)")
        for i in range(8): A.e(f"v_add_f32 v{32+i}, v{32+i}, v{40+i}")
        for i in range(8): A.e(f"v_add_f32 v{16+i}, v{16+i}, v{32+i}")
        def rnd():
            for i in range(4):
                A.e(f"v_cvt_pk_bf16_f32 v24, v{16+2*i}, v{17+2*i}\nv_lshlrev_b32 v{16+2*i}, 16, v24\nv_and_b32 v{17+2*i}, 0xffff0000, v24")
        if opt.get("round_y", False): rnd()
        A.e("s_waitcnt vmcnt(0)\nv_lshlrev_b32 v60, 16, v60")
        for i in range(8): A.e(f"v_add_f32 v{16+i}, v{16+i}, v60")
        if opt.get("round_y", False): rnd()
        for i in range(4):
            A.e(f"v_lshlrev_b32 v{32+2*i}, 16, v{56+i}\nv_and_b32 v{33+2*i}, 0xffff0000, v{56+i}")
        for i in range(8): A.e(f"v_add_f32 v{16+i}, v{16+i}, v{32+i}")
        o = 48 + 4*r
        for i in range(4): A.e(f"v_cvt_pk_bf16_f32 v{o+i}, v{16+2*i}, v{17+2*i}")
        A.e(f"buffer_store_dwordx4 v[{o}:{o+3}], v5, s[20:23], s34 offen")
    A.e(f"s_branch {done}")

def ocalc(A, opt):
    B = 100
    A.e(f"""
    v_and_b32 v{B}, 31, v1
    v_lshrrev_b32 v{B+1}, 5, v1
    v_lshlrev_b32 v{B+2}, 7, v{B}
    v_lshl_add_u32 v{B+2}, v{B+1}, 5, v{B+2}
    v_mov_b32 v{B+7}, 0x7ffffff0
    v_cmp_lt_u32 vcc, 20, v{B}
    v_add_u32 v{B+3}, 64, v{B+2}
    v_mul_u32_u24 v{B+4}, 1152, v{B}
    v_cndmask_b32 v{B+2}, v{B+2}, v{B+7}, vcc
    v_cndmask_b32 v{B+3}, v{B+3}, v{B+7}, vcc
    v_cmp_eq_u32 vcc, 1, v{B+1}
    v_lshl_add_u32 v{B+4}, v{B+1}, 4, v{B+4}
    v_add_u32 v{B+5}, 32, v{B+4}
    v_cndmask_b32 v{B+3}, v{B+3}, v{B+7}, vcc
    v_cndmask_b32 v{B+5}, v{B+5}, v{B+7}, vcc
    v_mul_u32_u24 v{B+6}, {OSTR}, v{B}
    v_lshl_add_u32 v{B+6}, v{B+1}, 3, v{B+6}
    s_mul_i32 s36, s30, 144
    v_add_u32 v{B+6}, s36, v{B+6}
    s_mul_i32 s37, s31, {64*1152}
    s_add_u32 s37, s37, s36
    s_add_u32 s38, s37, {32*1152}
    s_lshl_b32 s39, s30, 14
    s_mov_b64 s[68:69], vcc
    """)
    KVF = 108
    PQF = 172
    for hh in range(4):
        A.e(f"s_add_u32 s36, s39, {hh*4096}")
        for kk in range(2):
            for q in range(2):
                r = KVF + hh*16 + kk*8 + q*4
                A.e(f"buffer_load_dwordx4 {vr(r,4)}, v{B+2+kk}, s[60:63], s36 offen offset:{16*q}")
        for sh in range(2):
            for kk in range(2):
                r = PQF + hh*16 + sh*8 + kk*4
                A.e(f"buffer_load_dwordx4 {vr(r,4)}, v{B+4+kk}, s[12:15], s{37+sh} offen offset:{36*hh}")
    DD = 16
    for hh in range(4):
        A.e(f"s_waitcnt vmcnt({8*(3-hh)})")
        for i in range(8):
            r = KVF + hh*16
            A.e(f"v_cvt_pk_bf16_f32 v{r+i}, v{r+2*i}, v{r+2*i+1}")
        A.e("s_nop 1")
        for sh in range(2):
            d = DD + 16*sh; a = KVF + hh*16; b = PQF + hh*16 + sh*8
            A.e(f"v_mfma_f32_32x32x16_bf16 {vr(d,16)}, {vr(a,4)}, {vr(b,4)}, 0")
            A.e(f"v_mfma_f32_32x32x16_bf16 {vr(d,16)}, {vr(a+4,4)}, {vr(b+4,4)}, {vr(d,16)}")
        A.e("s_nop 7\ns_nop 3")
        for sh in range(2):
            d = DD + 16*sh
            A.e(f"v_cndmask_b32 v48, v{d+10}, v{d+8}, s[68:69]")
            if opt.get("round_o", True):
                A.e("v_cvt_pk_bf16_f32 v48, v48, v48\nv_and_b32 v48, 0xffff0000, v48")
            A.e(f"v_add_f32 v48, {hex(f2u(1e-6))}, v48")
            if opt.get("round_o", True):
                A.e("v_cvt_pk_bf16_f32 v48, v48, v48\nv_and_b32 v48, 0xffff0000, v48")
            A.e("v_rcp_f32 v48, v48")
            if opt.get("round_o", True):
                for i in range(5):
                    A.e(f"v_cvt_pk_bf16_f32 v49, v{d+2*i}, v{d+2*i+1}\nv_lshlrev_b32 v{d+2*i}, 16, v49\nv_and_b32 v{d+2*i+1}, 0xffff0000, v49")
            else: A.e("s_nop 0")
            for i in range(10): A.e(f"v_mul_f32 v{d+i}, v{d+i}, v48")
            for i in range(5): A.e(f"v_cvt_pk_bf16_f32 v{50+i}, v{d+2*i}, v{d+2*i+1}")
            off = 36*hh + sh*32*OSTR
            A.e(f"ds_write_b32 v{B+6}, v50 offset:{off}\nds_write_b32 v{B+6}, v51 offset:{off+4}")
            A.e(f"ds_write_b32 v{B+6}, v52 offset:{off+16}\nds_write_b32 v{B+6}, v53 offset:{off+20}")
            A.e(f"s_mov_b32 exec_hi, 0\nds_write_b32 v{B+6}, v54 offset:{off+32}\ns_mov_b32 exec_hi, -1")
    A.e("s_waitcnt lgkmcnt(0)")

def attn(A, opt, done):
    A.e(f"""
    s_lshr_b32 s31, s29, 1
    s_lshl_b32 s33, s28, 2
    s_add_u32 s31, s31, s33
    s_and_b32 s32, s29, 1
    """)
    A.srd_off(12, 4, 5, WS_PQ, SZ_X)
    A.srd(16, 10, 11, SZ_WO)
    A.srd(20, 70, 71, SZ_X)
    A.srd_off(24, 4, 5, WS_AP, SZ_X)
    A.srd_off(60, 4, 5, WS_KV, SZ_KV)
    A.srd(64, 54, 55, 256)
    fin = A.newlab("atfin"); cons = A.newlab("atcons")
    A.e(f"s_cmp_lt_u32 s30, 4\ns_cbranch_scc1 {cons}")
    A.e(f"s_mov_b32 {LR['bP']}, 0\ns_mul_i32 {LR['bW']}, s32, 576\ns_mov_b32 {LR['K']}, 0")
    wst = [0, 5, 10, 14, 18]
    labs = [A.newlab(f"atld{w}") for w in range(4)]
    for w in range(1, 4): A.e(f"s_cmp_eq_u32 s30, {4+w}\ns_cbranch_scc1 {labs[w]}")
    for w in range(4):
        A.lab(labs[w])
        n = wst[w+1] - wst[w]
        for t in range(n):
            imm = t*1024 if t < 4 else 0
            A.e(f"v_add_u32 v3, {(wst[w]+t)*64}, v1")
            A.vdiv("v4", "v3", 36, "s33")
            A.e(f"""
            v_mul_u32_u24 v5, 36, v4
            v_sub_u32 v5, v3, v5
            v_bfe_u32 v6, v4, 3, 1
            v_lshlrev_b32 v6, 1, v6
            v_xor_b32 v5, v5, v6
            v_mul_u32_u24 v4, 1152, v4
            v_lshl_add_u32 v4, v5, 4, v4
            v_subrev_u32 v{10+t}, {imm}, v4
            """)
        runs = [(OT + wst[w]*1024, [(10+t, "s[16:19]", 'W', t*1024, "") for t in range(4)])]
        if n == 5: runs.append((OT + wst[w]*1024 + 4096, [(14, "s[16:19]", 'W', 0, "")]))
        loader(A, f"atw{w}", runs, 18, AT_NS, AT_ST, 2, 0, 32*1152, 18, LR, hook=lambda: ocalc(A, opt))
        A.e(f"s_branch {fin}")
    A.lab(cons)
    ocalc(A, opt)
    A.e(f"""
    s_and_b32 s33, s30, 1
    s_lshr_b32 s34, s30, 1
    v_and_b32 v2, 15, v1
    v_lshrrev_b32 v3, 4, v1
    v_and_b32 v4, 1, v3
    v_lshl_add_u32 v4, v4, 4, v2
    v_mul_u32_u24 v4, 1152, v4
    v_lshrrev_b32 v5, 1, v3
    v_lshl_add_u32 v9, v5, 4, v4
    s_lshl_b32 s35, s31, 1
    s_add_u32 s35, s35, s34
    s_mul_i32 s35, s35, {32*1152}
    s_mul_i32 s36, s32, 576
    s_add_u32 s35, s35, s36
    s_mul_i32 s36, s33, 288
    s_add_u32 s57, s35, s36
    """)
    for t in range(9): A.e(f"buffer_load_dwordx4 {vr(200+4*t,4)}, v9, s[20:23], s57 offen offset:{32*t}")
    A.e(f"""
    s_lshl_b32 s35, s34, 5
    v_add_u32 v4, s35, v2
    v_mul_u32_u24 v4, {OSTR}, v4
    v_lshl_add_u32 v13, v3, 4, v4
    v_subrev_u32 v13, 64, v13
    v_lshrrev_b32 v5, 2, v2
    v_lshl_add_u32 v4, v3, 3, v5
    v_mul_u32_u24 v4, 576, v4
    v_and_b32 v5, 3, v2
    v_lshl_add_u32 v4, v5, 3, v4
    s_mul_i32 s35, s33, 288
    s_add_u32 s35, s35, {OT}
    v_add_u32 v4, s35, v4
    v_and_b32 v5, 1, v3
    v_lshlrev_b32 v5, 5, v5
    v_add_u32 v11, v4, v5
    v_sub_u32 v12, v4, v5
    s_cmp_eq_u32 s33, 0
    s_cbranch_scc1 L_atnoswap
    v_swap_b32 v11, v12
    L_atnoswap:
    """)
    ACC = 16; SB = 88; RB = 104
    stat = [(nt*4, [(4, 0, f"ds_read_b128 {{dst}}, v13 offset:{nt*16*OSTR}")]) for nt in range(2)]
    strm = []
    for t in range(9):
        va = 14 if t % 2 == 0 else 15
        strm.append([(2, 0, f"ds_read_b64_tr_b16 {{dst}}, v{va} offset:{t*32}"),
                     (2, 2, f"ds_read_b64_tr_b16 {{dst}}, v{va} offset:{t*32+4*576}")])
    def mf(j, sb, rb, first):
        return [f"{M16} {vr(ACC+(j*2+nt)*4,4)}, {vr(rb,4)}, {vr(sb+nt*4,4)}, {'0' if first else vr(ACC+(j*2+nt)*4,4)}" for nt in range(2)]
    consumer_ring(A, "at", 18, AT_NS, AT_ST, [(14,11),(15,12)], stat, 8, SB, strm, 9, RB, 5, mf, "s44", "s47",
                  addr_extra="v_add_u32 v13, 64, v13")
    A.e("s_nop 7\ns_waitcnt vmcnt(0)")
    for t in range(9):
        a = ACC + t*8; p = 140 + 4*t; x = 200 + 4*t
        for i in range(4): A.e(f"v_cvt_pk_bf16_f32 v{p+i}, v{a+2*i}, v{a+2*i+1}")
        A.e(f"s_nop 1\nv_permlane16_swap_b32 v{p}, v{p+2}\nv_permlane16_swap_b32 v{p+1}, v{p+3}")
        A.e("s_nop 1")
        for i in range(4):
            A.e(f"""
            v_lshlrev_b32 v{a}, 16, v{p+i}
            v_and_b32 v{a+1}, 0xffff0000, v{p+i}
            v_lshlrev_b32 v{a+2}, 16, v{x+i}
            v_and_b32 v{a+3}, 0xffff0000, v{x+i}
            v_add_f32 v{a}, v{a}, v{a+2}
            v_add_f32 v{a+1}, v{a+1}, v{a+3}
            v_cvt_pk_bf16_f32 v{p+i}, v{a}, v{a+1}
            """)
        A.e(f"buffer_store_dwordx4 {vr(p,4)}, v9, s[24:27], s57 offen offset:{32*t} sc1")
    A.e("s_waitcnt vmcnt(0)")
    A.lab(fin)
    A.e(f"""
    s_barrier
    s_cmp_lg_u32 s30, 0
    s_cbranch_scc1 {done}
    s_lshl_b32 s33, s31, 1
    s_add_u32 s33, s33, s32
    s_lshl_b32 s33, s33, 2
    v_mov_b32 v3, s33
    v_mov_b32 v4, 1
    s_mov_b64 exec, 1
    buffer_store_dword v4, v3, s[64:67], 0 offen sc1
    s_branch {done}
    """)

def gen_k3(A, name, opt):
    kernel_head(A, name)
    done = A.newlab("k3done"); la = A.newlab("k3attn")
    A.e(f"""
    s_cmp_ge_u32 s2, 256
    s_cbranch_scc1 {done}
    s_load_dwordx2 s[4:5], s[0:1], {KA_WS}
    s_load_dwordx2 s[6:7], s[0:1], {KA_W2}
    s_load_dwordx2 s[8:9], s[0:1], {KA_B2}
    s_load_dwordx2 s[10:11], s[0:1], {KA_WO}
    s_load_dwordx4 s[52:55], s[0:1], {KA_OUT}
    s_load_dwordx2 s[70:71], s[0:1], {KA_X}
    s_and_b32 s28, s2, 7
    s_lshr_b32 s29, s2, 3
    v_lshrrev_b32 v2, 6, v0
    v_and_b32 v1, 63, v0
    v_readfirstlane_b32 s30, v2
    s_waitcnt lgkmcnt(0)
    s_cmp_lt_u32 s29, 8
    s_cbranch_scc1 {la}
    """)
    gemm2(A, opt, done)
    A.lab(la)
    attn(A, opt, done)
    A.lab(done)
    A.e("s_endpgm")
    kernel_desc(A, name, 256, 102)
    return f"; @launch kernel={name} grid=(256,1,1) block=(512,1,1) lds={max(G2_NS*G2_ST, AT_LDS)}"
```

```python
S=2048; D=576; F=4608; H=32; DH=18
KA_X=0; KA_WQKV=8; KA_WO=16; KA_BX=24; KA_W1=32; KA_B1=40; KA_W2=48; KA_B2=56; KA_OUT=64; KA_DBG=72; KA_WS=80
MB=1<<20
WS_XN=0*MB
WS_HT=4*MB
WS_U =8*MB
WS_PQ=16*MB
WS_KV=20*MB
WS_AP=24*MB
SZ_X=S*D*2; SZ_WQKV=D*3*D*2; SZ_WO=D*D*2; SZ_W1=S*F*2; SZ_W2=F*S*2; SZ_B1=F*2; SZ_B2=S*2
SZ_U=D*F*2; SZ_KV=H*32*32*4
FT=0x78
```

```python
import sys, os
sys.path.insert(0, os.path.dirname(os.path.abspath(__file__)))
from asm import *
from k1 import gen_k1
from k2 import gen_k2
from k3 import gen_k3
HDR = open("parallel_sum__linear_attn_block__mixer_token_mlp__prompt.s.ref").read().split("; Override")[0]
def build(opt=None):
    opt = opt or {}
    A = Asm()
    l1 = gen_k1(A, "ln_kernel", opt)
    l2 = gen_k2(A, "gemm1_qkv_kernel", opt)
    l3 = gen_k3(A, "gemm2_attn_kernel", opt)
    return HDR + "\n".join([l1, l2, l3]) + '\n.amdgcn_target "amdgcn-amd-amdhsa--gfx950"\n' + A.text()
if __name__ == "__main__":
    out = sys.argv[1] if len(sys.argv) > 1 else "parallel_sum__linear_attn_block__mixer_token_mlp__prompt.s"
    opt = eval(sys.argv[2]) if len(sys.argv) > 2 else {}
    open(out, "w").write(build(opt))
    print("wrote", out)
```

```python
class Asm:
    def __init__(self):
        self.L = []
        self.uid = 0
    def e(self, s):
        for line in s.strip("\n").split("\n"):
            line = line.strip()
            if not line: continue
            if line.endswith(":") and " " not in line: self.L.append(line)
            else: self.L.append("  " + line)
    def c(self, s): self.L.append("  ; " + s)
    def lab(self, name): self.L.append(name + ":")
    def newlab(self, base):
        self.uid += 1
        return f"L_{base}_{self.uid}"
    def text(self): return "\n".join(self.L) + "\n"
    stamps = False
    sbase = 0
    def stamp(self, i):
        i += self.sbase
        if self.stamps: self.e(f"s_memrealtime s[{80+2*i}:{81+2*i}]")
    def stamp_init(self):
        if self.stamps:
            self.e("s_memrealtime s[80:81]\ns_memtime s[96:97]")
            for i in range(1, 7): self.e(f"s_mov_b32 s{80+2*i}, 0")
    def stamp_out(self, kid):
        if self.stamps:
            self.e(f"""
            s_mov_b64 exec, -1
            s_waitcnt vmcnt(0)
            s_memrealtime s[94:95]
            s_memtime s[6:7]
            s_load_dwordx2 s[4:5], s[0:1], 80
            v_mbcnt_lo_u32_b32 v1, -1, 0
            v_mbcnt_hi_u32_b32 v1, -1, v1
            v_lshrrev_b32 v2, 6, v0
            s_lshl_b32 s99, s99, 3
            v_add_u32 v2, s99, v2
            v_lshlrev_b32 v2, 5, v2
            v_add_u32 v2, {(28<<20) + kid*131072}, v2
            s_waitcnt lgkmcnt(0)
            v_mov_b32 v4, s80
            v_mov_b32 v5, s82
            v_mov_b32 v6, s84
            v_mov_b32 v7, s86
            v_mov_b32 v8, s88
            v_mov_b32 v9, s90
            v_mov_b32 v10, s92
            v_mov_b32 v11, s94
            v_cmp_eq_u32 vcc, 0, v1
            s_and_saveexec_b64 s[8:9], vcc
            global_store_dwordx4 v2, v[4:7], s[4:5]
            global_store_dwordx4 v2, v[8:11], s[4:5] offset:16
            s_sub_u32 s6, s6, s96
            v_mov_b32 v4, s6
            v_add_u32 v2, 0x10000, v2
            global_store_dword v2, v4, s[4:5]
            """)
    def srd(self, d, lo, hi, nbytes):
        self.e(f"s_mov_b32 s{d}, s{lo}\ns_and_b32 s{d+1}, s{hi}, 0xffff\ns_mov_b32 s{d+2}, {nbytes}\ns_mov_b32 s{d+3}, 0x20000")
    def srd_off(self, d, lo, hi, off, nbytes):
        self.e(f"s_add_u32 s{d}, s{lo}, {off}\ns_addc_u32 s{d+1}, s{hi}, 0\ns_and_b32 s{d+1}, s{d+1}, 0xffff\ns_mov_b32 s{d+2}, {nbytes}\ns_mov_b32 s{d+3}, 0x20000")
    def sdiv(self, q, src, d, tmp):
        self.e(f"s_mov_b32 {tmp}, {(2**32 + d - 1)//d}\ns_mul_hi_u32 {q}, {src}, {tmp}")
    def vdiv(self, q, src, d, stmp):
        self.e(f"s_mov_b32 {stmp}, {(2**32 + d - 1)//d}\nv_mul_hi_u32 {q}, {src}, {stmp}")

def vr(a, n=1):
    return f"v{a}" if n == 1 else f"v[{a}:{a+n-1}]"
def sr(a, n=1):
    return f"s{a}" if n == 1 else f"s[{a}:{a+n-1}]"

def kernel_head(A, name):
    A.L += [".text", f".globl {name}", ".p2align 8", f".type {name},@function", f"{name}:"]
def kernel_desc(A, name, vgpr, sgpr=102, accum=None):
    if accum is None: accum = (vgpr + 3)//4*4
    A.L += ['.section .rodata,"a"', ".p2align 6", f".amdhsa_kernel {name}",
            f"  .amdhsa_next_free_vgpr {vgpr}", f"  .amdhsa_next_free_sgpr {sgpr}", f"  .amdhsa_accum_offset {accum}",
            "  .amdhsa_group_segment_fixed_size 0", "  .amdhsa_kernarg_size 88", "  .amdhsa_user_sgpr_count 2",
            "  .amdhsa_user_sgpr_kernarg_segment_ptr 1", "  .amdhsa_system_sgpr_workgroup_id_x 1",
            ".end_amdhsa_kernel"]
```

```python
from asm import *
ABL = {}
class LoaderCfg:
    pass

def loader(A, tag, runs, nst, NS, stage_bytes, lag, stepP, stepW, CL, R, hook=None, opt_run=None, sBig=None, lds_base=0,
           pre=None, slot0=0, sSave=None):
    allr = list(runs) + ([opt_run] if opt_run else [])
    def cnt(rs, kind=None): return sum(1 for r in rs for x in r[1] if kind is None or x[2] == kind)
    per, perb = cnt(runs), cnt(allr)
    nP, nPb = cnt(runs, 'P'), cnt(allr, 'P')
    sK, sCnt, sLo, sHi, sSlot, sP, sW, sJ, bP, bW = (R[k] for k in ("K","Cnt","Lo","Hi","Slot","P","W","J","bP","bW"))
    def run(lo, ins, slot=None, sp=None):
        A.e(f"s_add_u32 m0, {slot if slot is not None else sSlot}, {lo}")
        A.e("s_nop 0")
        for (v, srd, kind, imm, fl) in ins:
            so = (sp or sP) if kind == 'P' else sW
            off = f" offset:{imm}" if imm else ""
            A.e(f"buffer_load_dwordx4 v{v}, {srd}, {so} offen{off}{fl} lds")
    def runs_of(kind, slot=None, sp=None):
        for lo, ins in runs:
            if kind is None or ins[0][2] == kind: run(lo, ins, slot, sp)
        if opt_run and (kind is None or opt_run[1][0][2] == kind):
            l = A.newlab("nobig")
            A.e(f"s_cmp_eq_u32 {sBig}, 0\ns_cbranch_scc1 {l}")
            run(opt_run[0], opt_run[1], slot, sp); A.lab(l)
    def offs(sp=None):
        if stepP: A.e(f"s_mul_i32 {sp or sP}, {sK}, {stepP}\ns_add_u32 {sp or sP}, {sp or sP}, {bP}")
        A.e(f"s_mul_i32 {sW}, {sK}, {stepW}\ns_add_u32 {sW}, {sW}, {bW}")
    def advance():
        A.e(f"""
        s_add_u32 {sSlot}, {sSlot}, {stage_bytes}
        s_cmp_eq_u32 {sSlot}, {lds_base + NS*stage_bytes}
        s_cselect_b32 {sSlot}, {lds_base}, {sSlot}
        s_add_u32 {sK}, {sK}, 1
        """)
        if CL:
            A.e(f"""
            s_cmp_eq_u32 {sK}, {sHi}
            s_cselect_b32 {sK}, {sLo}, {sK}
            """)
            if CL < nst and not ABL.get('nochunk'):
                A.e(f"""
                s_add_u32 {sCnt}, {sCnt}, 1
                s_cmp_eq_u32 {sCnt}, {CL}
                s_cselect_b32 {sCnt}, 0, {sCnt}
                s_cselect_b32 {sP}, {CL}, 0
                s_add_u32 {sK}, {sK}, {sP}
                s_add_u32 {sLo}, {sLo}, {sP}
                s_add_u32 {sHi}, {sHi}, {sP}
                """)
    def issue():
        offs(); runs_of(None); advance()
    def waitn(a, b):
        if a != b:
            l1 = A.newlab("wb"); l2 = A.newlab("wj")
            A.e(f"s_cmp_eq_u32 {sBig}, 0\ns_cbranch_scc1 {l1}\ns_waitcnt vmcnt({min(63, b)})\ns_branch {l2}")
            A.lab(l1); A.e(f"s_waitcnt vmcnt({min(63, a)})"); A.lab(l2)
        else: A.e(f"s_waitcnt vmcnt({min(63, a)})")
    def wait(n): waitn(n*per, n*perb)
    P = NS - lag
    A.e(f"s_mov_b32 {sSlot}, {lds_base + slot0*stage_bytes}")
    if CL: A.e(f"s_mov_b32 {sCnt}, 0\ns_mov_b32 {sLo}, 0\ns_mov_b32 {sHi}, {CL}")
    lp = A.newlab(tag + "_ld"); sk = A.newlab(tag + "_sk"); nh = A.newlab(tag + "_nh")
    if pre:
        sv = int(sSave[1:])
        for j in range(P):
            offs(f"s{sv+j}"); runs_of('W'); advance()
        pre()
        A.stamp(1)
        for j in range(P):
            runs_of('P', slot=lds_base + ((slot0 + j) % NS)*stage_bytes, sp=f"s{sv+j}")
        for j in range(P - 1):
            waitn((P-1-j)*nP + j*per, (P-1-j)*nPb + j*perb); A.e("s_barrier"); issue()
        A.e(f"s_mov_b32 {sJ}, {2*P-1}")
        A.lab(lp)
    else:
        A.e(f"s_mov_b32 {sJ}, 0")
        A.stamp(1)
        A.lab(lp)
        A.e(f"s_cmp_lt_u32 {sJ}, {P}\ns_cbranch_scc1 {sk}")
        if hook:
            A.e(f"s_cmp_lg_u32 {sJ}, {P}\ns_cbranch_scc1 {nh}")
            hook()
            A.lab(nh)
    wait(P - 1); A.e("s_barrier")
    A.lab(sk)
    issue()
    A.e(f"s_add_u32 {sJ}, {sJ}, 1\ns_cmp_lt_u32 {sJ}, {nst}\ns_cbranch_scc1 {lp}")
    for j in range(nst - P, nst):
        wait(nst - 1 - j); A.e("s_barrier")
    A.e("s_barrier")
    A.stamp(2)

def poll(A, vaddr, srd, width, mask_lo, mask_hi=0, sleep=2):
    pl = A.newlab("poll")
    ld = {1: "buffer_load_dword v4", 2: "buffer_load_dwordx2 v[4:5]", 4: "buffer_load_dwordx4 v[4:7]"}[width]
    A.e(f"s_mov_b32 exec_lo, {mask_lo}\ns_mov_b32 exec_hi, {mask_hi}\ns_mov_b32 s78, 0")
    A.lab(pl)
    A.e(f"{ld}, v{vaddr}, {srd}, 0 offen sc1\ns_add_u32 s78, s78, 1\ns_waitcnt vmcnt(0)")
    for i in range(width): A.e(f"v_xor_b32 v{4+i}, s98, v{4+i}")
    for i in range(1, width): A.e(f"v_or_b32 v4, v4, v{4+i}")
    A.e(f"""
    v_cmp_ne_u32 vcc, 0, v4
    s_cmp_gt_u32 s78, 400000
    s_cbranch_scc1 {pl}_x
    s_cmp_eq_u64 vcc, 0
    s_cbranch_scc1 {pl}_x
    s_sleep {sleep}
    s_branch {pl}
    {pl}_x:
    s_mov_b64 exec, -1
    """)

def set_flag(A, soff, srd):
    A.e(f"""
    v_mov_b32 v3, {soff}
    v_mov_b32 v4, s98
    s_mov_b64 exec, 1
    buffer_store_dword v4, v3, {srd}, 0 offen sc1
    s_mov_b64 exec, -1
    """)

def consumer_full(A, tag, nst, NS, stage_bytes, bases, frags, nfreg, FB, mf, sSlot, sJ, mfma="v_mfma_f32_16x16x32_bf16", accw=4, dump=None):
    def addr():
        for vc, vb in bases: A.e(f"v_add_u32 v{vc}, {sSlot}, v{vb}")
        A.e(f"s_add_u32 {sSlot}, {sSlot}, {stage_bytes}\ns_cmp_eq_u32 {sSlot}, {NS*stage_bytes}\ns_cselect_b32 {sSlot}, 0, {sSlot}")
    def reads(p):
        out = []
        for off, ins in frags:
            for (n, so, fmt) in ins:
                out.append(fmt.format(dst=vr(FB + p*nfreg + off + so, n)))
        return out
    def mfmas(p, first=False):
        out = []
        for acc, a, b in mf:
            c = "0" if first else vr(acc, accw)
            out.append(f"{mfma} {vr(acc,accw)}, {vr(FB+p*nfreg+a,4)}, {vr(FB+p*nfreg+b,4)}, {c}")
        return out
    def body(p, first=False):
        addr()
        r = reads(p); m = mfmas(1-p, first)
        if ABL.get("noread"): r = []
        if ABL.get("nomfma"): m = m[:1]
        i = 0
        for k, x in enumerate(m):
            if i < len(r): A.e(r[i]); i += 1
            A.e(x)
        while i < len(r): A.e(r[i]); i += 1
        A.e("s_waitcnt lgkmcnt(0)\ns_barrier")
    A.e(f"s_mov_b32 {sSlot}, 0")
    A.e("s_barrier")
    A.stamp(1)
    addr()
    for x in reads(0): A.e(x)
    A.e("s_waitcnt lgkmcnt(0)\ns_barrier")
    body(1, first=True)
    rem = nst - 2
    assert rem % 2 == 0
    lp = A.newlab(tag + "_cs")
    A.e(f"s_mov_b32 {sJ}, 0")
    A.lab(lp)
    body(0); body(1)
    A.e(f"s_add_u32 {sJ}, {sJ}, 1\ns_cmp_lt_u32 {sJ}, {rem//2}\ns_cbranch_scc1 {lp}")
    ms = mfmas(1)
    LAG = 8
    for k, x in enumerate(ms):
        A.e(x)
        if dump and k >= LAG: A.e(dump(mf[k-LAG][0]))
    if dump:
        A.e("s_nop 7")
        for k in range(max(0, len(ms)-LAG), len(ms)): A.e(dump(mf[k][0]))
    A.stamp(2)

def consumer_sub2(A, tag, nst, NS, stage_bytes, bases, frags_of, nfreg, FB, mf, sSlot, sJ, tail=None,
                  mfma="v_mfma_f32_16x16x32_bf16", slot0=0):
    def addr():
        for vc, vb in bases: A.e(f"v_add_u32 v{vc}, {sSlot}, v{vb}")
        A.e(f"s_add_u32 {sSlot}, {sSlot}, {stage_bytes}\ns_cmp_eq_u32 {sSlot}, {NS*stage_bytes}\ns_cselect_b32 {sSlot}, 0, {sSlot}")
    def reads(kc):
        out = []
        for off, ins in frags_of(kc):
            for (n, so, fmt) in ins: out.append(fmt.format(dst=vr(FB + kc*nfreg + off + so, n)))
        return out
    def mfmas(kc, first=False):
        return [f"{mfma} {vr(acc,4)}, {vr(FB+kc*nfreg+a,4)}, {vr(FB+kc*nfreg+b,4)}, {'0' if first else vr(acc,4)}" for acc, a, b in mf]
    def step(r, m):
        if ABL.get("noread"): r = []
        if ABL.get("nomfma"): m = m[:1]
        i = 0
        for x in m:
            if i < len(r): A.e(r[i]); i += 1
            A.e(x)
        while i < len(r): A.e(r[i]); i += 1
        A.e("s_waitcnt lgkmcnt(0)")
    def stage(first=False):
        step(reads(1), mfmas(0, first))
        A.e("s_barrier"); addr()
        step(reads(0), mfmas(1))
    A.e(f"s_mov_b32 {sSlot}, {slot0*stage_bytes}")
    A.e("s_barrier")
    A.stamp(1)
    addr()
    for x in reads(0): A.e(x)
    A.e("s_waitcnt lgkmcnt(0)")
    stage(first=True)
    lp = A.newlab(tag + "_c2")
    A.e(f"s_mov_b32 {sJ}, 0")
    A.lab(lp)
    stage()
    A.e(f"s_add_u32 {sJ}, {sJ}, 1\ns_cmp_lt_u32 {sJ}, {nst-2}\ns_cbranch_scc1 {lp}")
    step(reads(1), mfmas(0))
    A.e("s_barrier")
    ms = mfmas(1)
    return ms

def drain(A, ms, accs, fn, LAG=8):
    for k, x in enumerate(ms):
        A.e(x)
        if k >= LAG: A.e(fn(accs[k-LAG]))
    A.e("s_nop 7")
    for k in range(max(0, len(ms)-LAG), len(ms)): A.e(fn(accs[k]))

def consumer_ring(A, tag, nst, NS, stage_bytes, bases, stat, nstat_reg, SB, strm, ring, RB, look, mf_of, sSlot, sJ,
                  pre_bar=None, post_bar=None, pre_bar0=None, addr_extra=None, pre_bar1=None, pre_bar2=None):
    n = len(strm); assert n % ring == 0 and look < ring
    q = []
    xq = []
    def addr():
        if addr_extra: A.e(addr_extra)
        for vc, vb in bases: A.e(f"v_add_u32 v{vc}, {sSlot}, v{vb}")
        A.e(f"s_add_u32 {sSlot}, {sSlot}, {stage_bytes}\ns_cmp_eq_u32 {sSlot}, {NS*stage_bytes}\ns_cselect_b32 {sSlot}, 0, {sSlot}")
    def rd_stat(p, tagid):
        out = []
        for off, ins in stat:
            for (nn, so, fmt) in ins: out.append((fmt.format(dst=vr(SB + p*nstat_reg + off + so, nn)), tagid))
        return out
    def rd_strm(j, tagid):
        return [(fmt.format(dst=vr(RB + (j % ring)*4 + so, nn)), tagid) for (nn, so, fmt) in strm[j]]
    def emit_reads(lst):
        for s, t in lst: A.e(s); q.append(t)
    def need(tags):
        last = -1
        for i, t in enumerate(q):
            if t in tags: last = i
        if last >= 0:
            rem = len(q) - 1 - last
            A.e(f"s_waitcnt lgkmcnt({min(15, rem)})")
            del q[:last+1]
    def stage(p, first=False, last=False):
        for j in range(n):
            pend = []
            jn = j + look
            if jn < n: pend = rd_strm(jn, ('c', jn))
            elif not last:
                if jn == n:
                    assert not xq
                    if first and pre_bar1: A.e(pre_bar1)
                    elif pre_bar: A.e(pre_bar)
                    A.e("s_barrier"); addr()
                    if post_bar: xq.extend(post_bar())
                    pend = rd_stat(1-p, ('n', 's')) + rd_strm(0, ('n', 0))
                else: pend = rd_strm(jn - n, ('n', jn - n))
            elif jn == n:
                A.e("s_barrier")
            need({('c', j), ('c', 's')})
            ms = mf_of(j, SB + p*nstat_reg, RB + (j % ring)*4, first)
            k = 0
            per = (len(pend) + len(ms) - 1)//len(ms)
            for m in ms:
                A.e(m)
                emit_reads(pend[k:k+per]); k += per
            emit_reads(pend[k:])
            if xq:
                x = xq.pop(0)
                if not last: A.e(x)
        for i, t in enumerate(q):
            if t[0] == 'n': q[i] = ('c', t[1])
    A.e(f"s_mov_b32 {sSlot}, 0")
    if pre_bar0: A.e(pre_bar0)
    A.e("s_barrier")
    if A.stamps: A.stamp(1); A.e("s_waitcnt lgkmcnt(0)")
    addr()
    emit_reads(rd_stat(0, ('c', 's')))
    for j in range(look): emit_reads(rd_strm(j, ('c', j)))
    stage(0, first=True)
    q0 = list(q); x0 = list(xq)
    rem = nst - 2
    assert rem % 2 == 0
    lp = A.newlab(tag + "_cr")
    A.e(f"s_mov_b32 {sJ}, 0")
    A.lab(lp)
    stage(1); stage(0)
    assert q == q0, (q, q0)
    assert xq == x0
    A.e(f"s_add_u32 {sJ}, {sJ}, 1\ns_cmp_lt_u32 {sJ}, {rem//2}\ns_cbranch_scc1 {lp}")
    stage(1, last=True)
    A.stamp(2)
```

```python
from asm import *
from layout import *
from core import *
from k1 import f2u, ln_body, code_prefetch, HSTR
from k2 import gelu8, LR
from k2b import phi_pack, LOG2E
from k3 import ocalc, OSTR, OT, AT_ST, AT_NS, KVB, AT_EP, ESTR
import math
M16 = "v_mfma_f32_16x16x32_bf16"
H1_PB = 18432; H1_WB = 64*384; H1_ST = H1_PB + H1_WB; H1_NS = 3; SZ_EX1 = 192*55296
S4_PB = 24576; S4_WB = 16384; S4_ST = S4_PB + S4_WB; S4_NS = 4; SZ_EX4 = 48*4*4*24576
QK_PB = 8192; QK_WB = 27648; QK_ST = QK_PB + QK_WB; QK_NS = 4
LN_LDS = 143360
FLS = "s[72:75]"
KNAME = "parallel_sum__linear_attn_block__mixer_token_mlp__prompt_kernel"

def ids(A):
    A.e("s_and_b32 s28, s99, 7\ns_lshr_b32 s29, s99, 3\ns_mov_b32 s30, s100\nv_and_b32 v1, 63, v0")

def ln_phase(A, opt):
    A.sbase = 0
    o = dict(opt); o.update(ln_st=" sc1", ln_lds=LN_LDS, fused=True)
    A.e(f"s_mov_b64 s[6:7], s[76:77]")
    ln_body(A, o, wgreg="s99")
    l = A.newlab("lnf")
    A.e(f"""
    s_add_u32 s98, s98, 1
    s_waitcnt vmcnt(0)
    s_barrier
    s_cmp_lg_u32 s100, 0
    s_cbranch_scc1 {l}
    s_lshr_b32 s33, s99, 3
    s_lshl_b32 s33, s33, 7
    s_and_b32 s34, s99, 7
    s_lshl_b32 s34, s34, 2
    s_add_u32 s33, s33, s34
    s_add_u32 s33, s33, {FL_LN*128}
    """)
    set_flag(A, "s33", FLS)
    A.lab(l)
    A.stamp(2)

def gemm1(A, opt, nxt):
    def tile():
        ids(A)
        A.e(f"""
        s_sub_u32 s29, s29, 8
        s_lshr_b32 s31, s29, 2
        s_lshr_b32 s32, s28, 1
        s_mul_i32 s32, s32, 6
        s_add_u32 s31, s31, s32
        s_and_b32 s32, s29, 3
        s_and_b32 s57, s28, 1
        """)
    def pre_epi():
        A.e(f"s_load_dwordx2 s[8:9], s[0:1], {KA_B1}")
        A.srd_off(20, 76, 77, WS_U, SZ_U)
        A.srd_off(68, 76, 77, WS_EX1, SZ_EX1)
        A.e(f"""
        s_lshl_b32 s58, s31, 1
        s_add_u32 s58, s58, s57
        s_lshl_b32 s59, s31, 2
        s_add_u32 s59, s59, s32
        s_lshl_b32 s59, s59, 1
        s_add_u32 s59, s59, s57
        v_lshrrev_b32 v2, 4, v1
        v_lshlrev_b32 v2, 3, v2
        v_lshlrev_b32 v239, 4, v1
        s_waitcnt lgkmcnt(0)
        """)
        A.srd(24, 8, 9, SZ_B1)
        for r in range(4):
            A.e(f"s_add_u32 s33, s30, {8*r}")
            A.sdiv("s34", "s33", 9, "s35")
            A.e(f"""
            s_mul_i32 s35, s58, 192
            s_lshl_b32 s36, s34, 6
            s_add_u32 s36, s36, s35
            buffer_load_dwordx2 v[{240+4*r}:{241+4*r}], v2, s[24:27], s36 offen
            buffer_load_dwordx2 v[{242+4*r}:{243+4*r}], v2, s[24:27], s36 offen offset:32
            s_mul_i32 s35, s34, 9
            s_sub_u32 s35, s33, s35
            s_mul_i32 s36, s34, 18432
            s_lshl_b32 s37, s35, 10
            s_add_u32 s{60+r}, s36, s37
            s_mul_i32 s36, s58, 3
            s_add_u32 s36, s36, s34
            s_mul_i32 s36, s36, {4*9216}
            s_mul_i32 s37, s32, 2304
            s_add_u32 s36, s36, s37
            s_lshl_b32 s37, s35, 8
            s_add_u32 s{64+r}, s36, s37
            """)
    epi = A.newlab("g1epi"); cons = A.newlab("g1cons")
    A.e(f"s_cmp_lt_u32 s100, 4\ns_cbranch_scc1 {cons}")
    A.sbase = 2
    A.e(f"s_load_dwordx2 s[6:7], s[0:1], {KA_W1}")
    tile()
    A.srd_off(12, 76, 77, WS_HT, SZ_X)
    CL = opt.get("g1_cl", 2); nseg = opt.get("g1_nseg", 2)
    A.e(f"""
    s_mul_i32 {LR['bP']}, s32, 2304
    s_mul_i32 s33, s57, {16*8*9216}
    s_add_u32 {LR['bP']}, {LR['bP']}, s33
    s_mul_i32 {LR['bW']}, s31, 384
    s_mul_i32 s33, s57, {16*64*9216}
    s_add_u32 {LR['bW']}, {LR['bW']}, s33
    """)
    if nseg > 1:
        A.e(f"s_lshr_b32 s33, s29, 2\ns_add_u32 s33, s33, s32\ns_and_b32 s33, s33, {nseg-1}\ns_mul_i32 {LR['K']}, s33, {CL//nseg}")
    else: A.e(f"s_mov_b32 {LR['K']}, 0"); CL = 0
    flP = opt.get("g1_flP", " sc1"); flW = opt.get("g1_flW", "")
    A.e(f"""
    s_sub_u32 s33, s30, 4
    s_lshl_b32 s34, s33, 8
    v_add_u32 v7, s34, v1
    s_mul_i32 s50, s33, 6144
    s_add_u32 s50, s50, {H1_PB}
    s_add_u32 s54, s50, 4096
    s_lshl_b32 s51, s33, 12
    s_lshl_b32 s52, s33, 10
    s_add_u32 s52, s52, 16384
    s_cmp_lt_u32 s33, 2
    s_cselect_b32 s53, 1, 0
    s_mul_i32 s36, s33, {16*9216}
    s_mov_b32 s34, {(2**32+23)//24}
    s_mov_b32 s35, {(2**32+143)//144}
    """)
    for t in range(6):
        imm = (t*1024 if t < 4 else (t-4)*1024)
        A.e(f"""
        v_add_u32 v3, {t*64}, v1
        v_mul_hi_u32 v4, v3, s34
        v_mul_u32_u24 v5, 24, v4
        v_sub_u32 v5, v3, v5
        v_and_b32 v6, 2, v4
        v_xor_b32 v5, v5, v6
        v_bfe_u32 v6, v4, 3, 1
        v_lshlrev_b32 v6, 2, v6
        v_xor_b32 v5, v5, v6
        v_mul_u32_u24 v4, 9216, v4
        v_lshl_add_u32 v4, v5, 4, v4
        v_subrev_u32 v4, {imm}, v4
        v_add_u32 v{10+t}, s36, v4
        """)
    for t in range(4):
        A.e(f"""
        v_add_u32 v3, {t*64}, v7
        v_mul_hi_u32 v4, v3, s35
        v_mul_u32_u24 v4, 6912, v4
        v_lshl_add_u32 v{16+t}, v7, 4, v4
        """)
    A.e(f"""
    s_lshl_b32 s36, s33, 6
    s_add_u32 s36, s36, 1024
    v_add_u32 v3, s36, v1
    v_lshlrev_b32 v3, 4, v3
    v_add_u32 v20, {7*6912}, v3
    s_waitcnt lgkmcnt(0)
    s_add_u32 s98, s98, 1
    """)
    A.srd(16, 6, 7, SZ_W1)
    def pf():
        rows = opt.get("pf_w1_rows", 0)
        if rows:
            tot = (rows + 23)//24*18
            A.e(f"""
            s_lshr_b32 s33, s28, 1
            s_mul_i32 s33, s33, 2304
            s_mul_i32 s34, s57, {1024*9216}
            s_add_u32 s33, s33, s34
            s_mul_i32 s34, s29, 9216
            s_add_u32 s33, s33, s34
            s_mov_b32 s34, {(2**32+17)//18}
            v_mov_b32 v23, {OOB}
            """)
            for j in range((tot + 255)//256):
                A.e(f"""
                v_add_u32 v3, {j*256-256}, v0
                v_mul_hi_u32 v4, v3, s34
                v_mul_u32_u24 v5, 18, v4
                v_sub_u32 v5, v3, v5
                v_mul_u32_u24 v4, {24*9216}, v4
                v_cmp_gt_u32 vcc, {tot}, v3
                v_lshl_add_u32 v4, v5, 7, v4
                s_nop 0
                v_cndmask_b32 v4, v23, v4, vcc
                buffer_load_dword v22, v4, s[16:19], s33 offen{opt.get('pf_w1_fl','')}
                """)
    def pre():
        if opt.get('pf_early'): pf()
        A.e('s_barrier\ns_barrier')
        if not opt.get('pf_early'): pf()
        l = A.newlab("g1np")
        A.e(f"""
        s_cmp_lg_u32 s30, 4
        s_cbranch_scc1 {l}
        v_lshrrev_b32 v3, 2, v1
        v_and_b32 v8, 3, v1
        v_lshlrev_b32 v3, 7, v3
        v_lshl_add_u32 v3, v8, 3, v3
        s_lshl_b32 s33, s57, 11
        s_add_u32 s33, s33, {FL_LN*128}
        v_add_u32 v8, s33, v3
        """)
        poll(A, 8, FLS, 2, -1, -1)
        A.lab(l)
        A.e("s_barrier")
    runs = [("s50", [(10+t, "s[16:19]", 'W', t*1024, flW) for t in range(4)]),
            ("s54", [(14+t, "s[16:19]", 'W', t*1024, flW) for t in range(2)]),
            ("s51", [(16+t, "s[12:15]", 'P', t*1024, flP) for t in range(4)])]
    loader(A, "g1", runs, 16, H1_NS, H1_ST, 1, 8*9216, 64*9216, CL, LR,
           opt_run=("s52", [(20, "s[12:15]", 'P', 0, flP)]), sBig="s53", pre=pre, sSave="s60")
    pre_epi()
    A.e(f"""
    s_cmp_lg_u32 s30, 4
    s_cbranch_scc1 {epi}
    s_add_u32 s33, s59, {FL_EX1}
    s_lshl_b32 s33, s33, 7
    v_lshlrev_b32 v8, 2, v1
    v_add_u32 v8, s33, v8
    """)
    poll(A, 8, FLS, 1, 3, 0, sleep=1)
    A.e(f"s_branch {epi}")
    A.lab(cons)
    ln_phase(A, opt)
    A.sbase = 2
    tile()
    pre_epi()
    A.e(f"""
    v_and_b32 v2, 15, v1
    v_lshrrev_b32 v3, 4, v1
    v_mul_u32_u24 v4, 2304, v3
    v_lshl_add_u32 v6, v2, 4, v4
    v_lshrrev_b32 v5, 2, v2
    v_lshl_add_u32 v4, v3, 3, v5
    v_mul_u32_u24 v4, 384, v4
    v_and_b32 v5, 3, v2
    v_lshl_add_u32 v4, v5, 3, v4
    v_add_u32 v4, {H1_PB}, v4
    v_lshrrev_b32 v5, 3, v2
    v_and_b32 v3, 1, v3
    v_lshl_add_u32 v5, v3, 1, v5
    s_mul_i32 s33, s30, 3
    v_xor_b32 v3, s33, v5
    v_lshl_add_u32 v7, v3, 5, v4
    s_add_u32 s33, s33, 1
    v_xor_b32 v3, s33, v5
    v_lshl_add_u32 v8, v3, 5, v4
    s_add_u32 s33, s33, 1
    v_xor_b32 v3, s33, v5
    v_lshl_add_u32 v9, v3, 5, v4
    s_and_b32 s33, s30, 1
    s_mul_i32 s55, s33, 27648
    s_xor_b32 s56, s59, 1
    s_mul_i32 s79, s56, 55296
    s_add_u32 s79, s79, s55
    v_add_u32 v10, s55, v239
    s_barrier
    """)
    ACC = 16; FB = 128; NF = 48
    def frags_of(kc):
        fr = []
        for mt in range(3):
            fr.append((mt*4, [(2, 0, f"ds_read_b64_tr_b16 {{dst}}, v{13+mt} offset:{kc*12288}"),
                              (2, 2, f"ds_read_b64_tr_b16 {{dst}}, v{13+mt} offset:{kc*12288+1536}")]))
        for nt in range(9):
            fr.append((12+nt*4, [(4, 0, f"ds_read_b128 {{dst}}, v12 offset:{kc*9216+nt*256}")]))
        return fr
    mf = [(ACC + (mt*9+nt)*4, mt*4, 12+nt*4) for mt in range(3) for nt in range(9)]
    ms = consumer_sub2(A, "g1", 16, H1_NS, H1_ST, [(12,6),(13,7),(14,8),(15,9)], frags_of, NF, FB, mf, "s44", "s47")
    accs = [m[0] for m in mf]
    own = A.newlab("g1own")
    A.e(f"s_lshr_b32 s33, s30, 1\ns_cmp_eq_u32 s33, s57\ns_cbranch_scc1 {own}")
    def snd(acc):
        t = (acc-ACC)//4
        pre = f"s_add_u32 s79, s79, 4096\n" if (t % 4 == 0 and t) else ""
        return pre + f"buffer_store_dwordx4 {vr(acc,4)}, v239, s[68:71], s79 offen offset:{(t%4)*1024} sc1"
    drain(A, ms, accs, snd)
    A.stamp(2)
    A.e(f"""
    s_add_u32 s56, s56, {FL_EX1}
    s_lshl_b32 s56, s56, 7
    s_and_b32 s33, s30, 1
    s_lshl_b32 s33, s33, 2
    s_add_u32 s56, s56, s33
    s_waitcnt vmcnt(0)
    """)
    set_flag(A, "s56", FLS)
    A.e(f"s_branch {epi}")
    A.lab(own)
    drain(A, ms, accs, lambda acc: f"ds_write_b128 v10, {vr(acc,4)} offset:{(acc-ACC)//4*1024}")
    A.stamp(2)
    A.e("s_waitcnt lgkmcnt(0)")
    A.lab(epi)
    k1 = -2.0*math.sqrt(2.0/math.pi)*math.log2(math.e); k2 = k1*0.044715
    A.e(f"""
    v_and_b32 v2, 15, v1
    v_lshrrev_b32 v3, 4, v1
    v_mul_u32_u24 v4, 9216, v3
    v_lshl_add_u32 v4, v2, 4, v4
    s_mov_b32 s50, {hex(f2u(k2))}
    v_mov_b32 v8, {hex(f2u(k1))}
    s_mul_i32 s51, s59, 55296
    s_add_u32 s52, s51, 9216
    s_barrier
    """)
    l3 = A.newlab("g1e3"); le = A.newlab("g1ee")
    def rd(r):
        b = 16 + 16*r
        A.e(f"""
        v_add_u32 v6, s{60+r}, v239
        buffer_load_dwordx4 v[{b+8}:{b+11}], v6, s[68:71], s51 offen sc1
        buffer_load_dwordx4 v[{b+12}:{b+15}], v6, s[68:71], s52 offen sc1
        ds_read_b128 v[{b}:{b+3}], v6
        ds_read_b128 v[{b+4}:{b+7}], v6 offset:9216
        """)
    def fin(r, vw):
        b = 16 + 16*r; bb = 240 + 4*r; T = 96
        if r == 0: A.e(f"s_waitcnt vmcnt({vw+2})")
        for i in range(4):
            A.e(f"v_lshlrev_b32 v{T+2*i}, 16, v{bb+i}\nv_and_b32 v{T+1+2*i}, 0xffff0000, v{bb+i}")
        if r == 0: A.e("s_waitcnt lgkmcnt(0)")
        for i in range(4): A.e(f"v_pk_add_f32 v[{b+2*i}:{b+2*i+1}], v[{b+2*i}:{b+2*i+1}], v[{T+2*i}:{T+1+2*i}]")
        A.e(f"s_waitcnt vmcnt({vw})")
        for i in range(4): A.e(f"v_pk_add_f32 v[{b+2*i}:{b+2*i+1}], v[{b+2*i}:{b+2*i+1}], v[{b+8+2*i}:{b+9+2*i}]")
        gelu8(A, b, b+8, 8, "s50")
        o = 104 + 4*r
        for i in range(4): A.e(f"v_cvt_pk_bf16_f32 v{o+i}, v{b+2*i}, v{b+1+2*i}")
        A.e(f"buffer_store_dwordx4 v[{o}:{o+3}], v4, s[20:23], s{64+r} offen sc1")
    for r in range(3): rd(r)
    A.e(f"s_cmp_ge_u32 s30, 3\ns_cbranch_scc1 {l3}")
    rd(3)
    fin(0, 6); fin(1, 5); fin(2, 4); fin(3, 3)
    A.e(f"s_branch {le}")
    A.lab(l3)
    fin(0, 4); fin(1, 3); fin(2, 2)
    A.lab(le)
    A.e(f"""
    s_add_u32 s33, s58, {FL_U}
    s_lshl_b32 s33, s33, 7
    s_lshl_b32 s34, s32, 2
    s_add_u32 s33, s33, s34
    s_waitcnt vmcnt(0)
    s_barrier
    s_cmp_lg_u32 s30, 0
    s_cbranch_scc1 {nxt}
    """)
    set_flag(A, "s33", FLS)

def gemm2(A, opt, done):
    A.sbase = 4
    A.e(f"""
    s_load_dwordx2 s[6:7], s[0:1], {KA_W2}
    s_load_dwordx2 s[8:9], s[0:1], {KA_B2}
    s_load_dwordx2 s[52:53], s[0:1], {KA_OUT}
    """)
    ids(A)
    A.e("s_sub_u32 s33, s29, 8")
    A.sdiv("s56", "s33", 3, "s34")
    A.e(f"""
    s_mul_i32 s34, s56, 3
    s_sub_u32 s32, s33, s34
    s_and_b32 s34, s28, 1
    s_lshl_b32 s34, s34, 3
    s_add_u32 s31, s56, s34
    s_lshr_b32 s57, s28, 1
    s_waitcnt lgkmcnt(0)
    """)
    epi = A.newlab("g2epi"); cons = A.newlab("g2cons")
    def pre_epi():
        A.srd(20, 52, 53, SZ_X)
        A.srd_off(24, 76, 77, WS_AP, SZ_X)
        A.srd(60, 8, 9, SZ_B2)
        A.srd_off(68, 76, 77, WS_EX, SZ_EX4)
        A.e(f"""
        s_lshr_b32 s33, s57, 1
        s_lshl_b32 s36, s31, 1
        s_add_u32 s36, s36, s33
        s_and_b32 s33, s57, 1
        s_lshl_b32 s37, s32, 1
        s_add_u32 s37, s37, s33
        s_mul_i32 s34, s36, {64*1152}
        s_mul_i32 s35, s37, 192
        s_add_u32 s64, s34, s35
        s_lshl_b32 s66, s36, 1
        s_cmp_ge_u32 s37, 3
        s_cselect_b32 s37, 576, 0
        s_addc_u32 s66, s66, 0
        s_sub_u32 s37, s35, s37
        s_mul_i32 s35, s66, 36864
        s_add_u32 s65, s37, s35
        s_lshl_b32 s35, s36, 7
        s_mul_i32 s58, s31, 3
        s_add_u32 s58, s58, s32
        s_lshl_b32 s58, s58, 2
        s_add_u32 s59, s58, s57
        s_mul_i32 s67, s59, {4*24576}
        v_and_b32 v2, 15, v1
        v_lshrrev_b32 v3, 4, v1
        v_and_b32 v4, 1, v3
        v_lshlrev_b32 v4, 5, v4
        v_lshrrev_b32 v3, 1, v3
        v_lshl_add_u32 v4, v3, 4, v4
        s_and_b32 s33, s30, 3
        s_lshl_b32 s33, s33, 4
        v_add_u32 v2, s33, v2
        v_mul_u32_u24 v5, 1152, v2
        v_add_u32 v240, v5, v4
        v_mul_u32_u24 v5, 576, v2
        v_add_u32 v241, v5, v4
        v_lshlrev_b32 v5, 1, v2
        buffer_load_ushort v242, v5, s[60:63], s35 offen
        v_lshlrev_b32 v243, 4, v1
        """)
    A.e(f"s_cmp_lt_u32 s30, 4\ns_cbranch_scc1 {cons}")
    A.srd_off(12, 76, 77, WS_U, SZ_U)
    A.srd(16, 6, 7, SZ_W2)
    CL = opt.get("g2_cl", 3); nseg = opt.get("g2_nseg", 3)
    A.e(f"""
    s_mul_i32 {LR['bP']}, s32, 3072
    s_mul_i32 s33, s57, {18*8*9216}
    s_add_u32 {LR['bP']}, {LR['bP']}, s33
    s_lshl_b32 {LR['bW']}, s31, 8
    s_mul_i32 s33, s57, {18*64*4096}
    s_add_u32 {LR['bW']}, {LR['bW']}, s33
    """)
    if nseg > 1:
        A.e(f"s_add_u32 s33, s56, s32")
        A.sdiv("s34", "s33", nseg, "s35")
        A.e(f"s_mul_i32 s34, s34, {nseg}\ns_sub_u32 s33, s33, s34\ns_mul_i32 {LR['K']}, s33, {CL//nseg}")
    else: A.e(f"s_mov_b32 {LR['K']}, 0"); CL = 0
    flP = opt.get("g2_flP", " sc1"); flW = opt.get("g2_flW", "")
    A.e(f"""
    s_sub_u32 s33, s30, 4
    v_lshrrev_b32 v3, 4, v1
    v_and_b32 v4, 15, v1
    v_lshlrev_b32 v5, 1, v3
    v_xor_b32 v4, v4, v5
    v_lshlrev_b32 v3, 12, v3
    v_lshl_add_u32 v3, v4, 4, v3
    s_lshl_b32 s35, s33, 16
    v_add_u32 v10, s35, v3
    v_xor_b32 v11, 128, v10
    v_add_u32 v11, {16384-1024}, v11
    v_add_u32 v12, {32768-2048}, v10
    v_add_u32 v13, {32768-2048}, v11
    s_mul_i32 s34, s33, {2*9216}
    v_lshlrev_b32 v14, 4, v1
    v_add_u32 v14, s34, v14
    v_add_u32 v15, 9216, v14
    s_lshl_b32 s50, s33, 12
    s_add_u32 s50, s50, {S4_PB}
    s_mul_i32 s51, s33, 6144
    s_add_u32 s54, s51, 3072
    """)
    def pre():
        l = A.newlab("g2np")
        A.e(f"""
        s_cmp_lg_u32 s30, 4
        s_cbranch_scc1 {l}
        v_lshrrev_b32 v3, 2, v1
        v_and_b32 v8, 3, v1
        v_lshlrev_b32 v3, 7, v3
        v_lshl_add_u32 v3, v8, 2, v3
        s_mul_i32 s33, s57, {12*128}
        s_add_u32 s33, s33, {FL_U*128}
        v_add_u32 v8, s33, v3
        """)
        poll(A, 8, FLS, 1, -1, 0xffff)
        A.lab(l)
        A.e("s_barrier")
    runs = [("s50", [(10+t, "s[16:19]", 'W', t*1024, flW) for t in range(4)]),
            ("s51", [(14, "s[12:15]", 'P', t*1024, flP) for t in range(3)]),
            ("s54", [(15, "s[12:15]", 'P', t*1024, flP) for t in range(3)])]
    loader(A, "g2", runs, 18, S4_NS, S4_ST, 1, 8*9216, 64*4096, CL, LR, pre=pre, sSave="s60")
    pre_epi()
    A.e(f"""
    s_cmp_lg_u32 s30, 4
    s_cbranch_scc1 {epi}
    s_add_u32 s33, s59, {FL_EX2}
    s_lshl_b32 s33, s33, 7
    s_lshl_b32 s34, s66, 7
    v_lshlrev_b32 v8, 2, v1
    v_add_u32 v8, s33, v8
    s_mov_b32 m0, s57
    v_writelane_b32 v8, s34, m0
    """)
    poll(A, 8, FLS, 1, 15, 0, sleep=1)
    A.e(f"s_branch {epi}")
    A.lab(cons)
    pre_epi()
    A.e(f"""
    s_and_b32 s33, s30, 1
    s_lshr_b32 s34, s30, 1
    v_and_b32 v2, 15, v1
    v_lshrrev_b32 v3, 4, v1
    v_mul_u32_u24 v4, 3072, v3
    v_lshl_add_u32 v4, v2, 4, v4
    s_mul_i32 s35, s33, 1536
    v_add_u32 v6, s35, v4
    v_lshrrev_b32 v5, 2, v2
    v_lshl_add_u32 v4, v3, 2, v5
    v_and_b32 v5, 7, v4
    s_lshl_b32 s35, s34, 2
    v_xor_b32 v5, s35, v5
    v_lshlrev_b32 v4, 8, v4
    v_lshl_add_u32 v4, v5, 5, v4
    v_and_b32 v5, 3, v2
    v_lshl_add_u32 v4, v5, 3, v4
    v_add_u32 v7, {S4_PB}, v4
    v_xor_b32 v8, 32, v7
    v_xor_b32 v9, 64, v7
    v_xor_b32 v10, 96, v7
    s_add_u32 s55, s58, s30
    s_lshl_b32 s79, s55, 2
    s_add_u32 s79, s79, s57
    s_mul_i32 s79, s79, 24576
    s_barrier
    """)
    ACC = 16; FB = 112; NF = 40
    def frags_of(kc):
        fr = []
        for nt in range(4):
            fr.append((24+nt*4, [(2, 0, f"ds_read_b64_tr_b16 {{dst}}, v{12+nt} offset:{kc*8192}"),
                                 (2, 2, f"ds_read_b64_tr_b16 {{dst}}, v{12+nt} offset:{kc*8192+4096}")]))
        for mt in range(6):
            fr.append((mt*4, [(4, 0, f"ds_read_b128 {{dst}}, v11 offset:{kc*12288+mt*256}")]))
        return fr
    mf = [(ACC + (mt*4+nt)*4, mt*4, 24+nt*4) for mt in range(6) for nt in range(4)]
    ms = consumer_sub2(A, "g2", 18, S4_NS, S4_ST, [(11,6),(12,7),(13,8),(14,9),(15,10)], frags_of, NF, FB, mf, "s44", "s47")
    own = A.newlab("g2own")
    accs = [m[0] for m in mf]
    A.e(f"s_cmp_eq_u32 s30, s57\ns_cbranch_scc1 {own}")
    def snd(acc):
        t = (acc-ACC)//4
        pre = f"s_add_u32 s79, s79, 4096\n" if (t % 4 == 0 and t) else ""
        return pre + f"buffer_store_dwordx4 {vr(acc,4)}, v243, s[68:71], s79 offen offset:{(t%4)*1024} sc1"
    drain(A, ms, accs, snd)
    A.stamp(2)
    A.e(f"""
    s_add_u32 s55, s55, {FL_EX2}
    s_lshl_b32 s55, s55, 7
    s_lshl_b32 s33, s57, 2
    s_add_u32 s55, s55, s33
    s_waitcnt vmcnt(0)
    """)
    set_flag(A, "s55", FLS)
    A.e(f"s_branch {epi}")
    A.lab(own)
    drain(A, ms, accs, lambda acc: f"ds_write_b128 v243, {vr(acc,4)} offset:{(acc-ACC)//4*1024}")
    A.stamp(2)
    A.e("s_waitcnt lgkmcnt(0)")
    A.lab(epi)
    A.e(f"""
    s_add_u32 s33, s57, 1
    s_and_b32 s33, s33, 3
    s_mul_i32 s36, s33, 24576
    s_add_u32 s33, s57, 2
    s_and_b32 s33, s33, 3
    s_mul_i32 s37, s33, 24576
    s_add_u32 s33, s57, 3
    s_and_b32 s33, s33, 3
    s_mul_i32 s38, s33, 24576
    s_and_b32 s33, s30, 3
    s_lshl_b32 s33, s33, 10
    s_lshr_b32 s34, s30, 2
    s_lshl_b32 s35, s34, 13
    s_add_u32 s33, s33, s35
    v_add_u32 v243, s33, v243
    s_lshl_b32 s34, s34, 6
    s_add_u32 s64, s64, s34
    s_add_u32 s65, s65, s34
    s_add_u32 s36, s36, s67
    s_add_u32 s37, s37, s67
    s_add_u32 s38, s38, s67
    s_barrier
    """)
    def loads(r):
        e = 16 + 40*r
        if r: A.e("v_add_u32 v244, 16384, v243")
        va = 244 if r else 243
        A.e(f"v_add_u32 v245, 4096, v{va}")
        for j, sb in enumerate(("s36", "s37", "s38")):
            A.e(f"buffer_load_dwordx4 {vr(e+8+8*j,4)}, v{va}, s[68:71], {sb} offen sc1")
            A.e(f"buffer_load_dwordx4 {vr(e+12+8*j,4)}, v245, s[68:71], {sb} offen sc1")
        A.e(f"buffer_load_dwordx4 {vr(e+32,4)}, v241, s[24:27], s65 offen offset:{128*r} sc1")
        A.e(f"ds_read_b128 {vr(e,4)}, v{va}\nds_read_b128 {vr(e+4,4)}, v{va} offset:4096")
    def pk(d, a):
        for i in range(4): A.e(f"v_pk_add_f32 v[{d+2*i}:{d+2*i+1}], v[{d+2*i}:{d+2*i+1}], v[{a+2*i}:{a+2*i+1}]")
    def final(r, vw):
        e = 16 + 40*r
        A.e(f"s_waitcnt vmcnt({vw+3}) lgkmcnt(0)")
        pk(e, e+8); pk(e, e+16)
        A.e(f"s_waitcnt vmcnt({vw+1})")
        pk(e, e+24)
        A.e(f"v_lshlrev_b32 v{e+8}, 16, v242\nv_lshlrev_b32 v{e+9}, 16, v242")
        for i in range(4): A.e(f"v_pk_add_f32 v[{e+2*i}:{e+2*i+1}], v[{e+2*i}:{e+2*i+1}], v[{e+8}:{e+9}]")
        A.e("s_nop 1")
        for i in range(4): A.e(f"v_permlane16_swap_b32 v{e+i}, v{e+4+i}")
        A.e(f"s_waitcnt vmcnt({vw})")
        for i in range(4):
            A.e(f"v_lshlrev_b32 v{e+16+2*i}, 16, v{e+32+i}\nv_and_b32 v{e+17+2*i}, 0xffff0000, v{e+32+i}")
        pk(e, e+16)
        o = e + 36
        for i in range(4): A.e(f"v_cvt_pk_bf16_f32 v{o+i}, v{e+2*i}, v{e+1+2*i}")
        A.e(f"buffer_store_dwordx4 v[{o}:{o+3}], v240, s[20:23], s64 offen offset:{128*r}")
    hi2 = A.newlab("g2hi2")
    loads(0)
    A.e(f"s_cmp_ge_u32 s30, 4\ns_cbranch_scc1 {hi2}")
    loads(1); final(0, 7); final(1, 1)
    A.e(f"s_branch {done}")
    A.lab(hi2)
    final(0, 0)
    A.e(f"s_branch {done}")

def qkv(A, opt, nxt):
    def setup():
        ids(A)
        A.e(f"""
        s_lshr_b32 s31, s28, 1
        s_and_b32 s32, s28, 1
        s_lshl_b32 s32, s32, 3
        s_add_u32 s32, s32, s29
        s_mov_b32 s50, {hex(f2u(LOG2E))}
        s_mov_b32 s51, {hex(f2u(LOG2E))}
        s_mov_b32 s56, {hex(f2u(1e-6))}
        s_and_b32 s33, s30, 3
        v_and_b32 v2, 15, v1
        v_lshrrev_b32 v3, 4, v1
        v_lshrrev_b32 v4, 2, v2
        v_lshlrev_b32 v5, 11, v3
        v_lshl_add_u32 v10, v2, 4, v5
        s_lshl_b32 s34, s33, 9
        v_add_u32 v10, s34, v10
        v_lshl_add_u32 v4, v3, 2, v4
        v_mul_u32_u24 v4, 288, v4
        v_and_b32 v5, 3, v2
        v_lshl_add_u32 v4, v5, 3, v4
        v_add_u32 v11, {QK_PB}, v4
        """)
    lq = A.newlab("qw"); fin = A.newlab("qfin")
    A.e(f"s_cmp_ge_u32 s100, 4\ns_cbranch_scc1 {lq}")
    stat = [(mt*4, [(4, 0, f"ds_read_b128 {{dst}}, v13 offset:{mt*256}")]) for mt in range(2)]
    def wfrag(sg, t):
        return [(2, 0, f"ds_read_b64_tr_b16 {{dst}}, v14 offset:{sg*9216+t*32}"),
                (2, 2, f"ds_read_b64_tr_b16 {{dst}}, v14 offset:{sg*9216+t*32+4608}")]
    ln_phase(A, opt)
    A.sbase = 2
    setup()
    A.e("s_barrier")
    ACC = 16; SB = 160; RB = 176
    def mf_kv(j, sb, rb, first):
        return [f"{M16} {vr(ACC+(j*2+mt)*4,4)}, {vr(sb+mt*4,4)}, {vr(rb,4)}, {'0' if first else vr(ACC+(j*2+mt)*4,4)}" for mt in range(2)]
    consumer_ring(A, "kv", 18, QK_NS, QK_ST, [(13,10),(14,11)], stat, 8, SB, [wfrag(1,t) for t in range(9)] + [wfrag(2,t) for t in range(9)],
                  9, RB, opt.get("kv_look", 5), mf_kv, "s44", "s47")
    A.e("s_nop 7")
    PK = 160; VV = 196
    for t in range(9):
        phi_pack(A, ACC + t*8, [PK+t*4+i for i in range(4)], 232, opt)
    for t in range(9):
        for i in range(4):
            a = ACC + (9+t)*8 + 2*i
            A.e(f"v_cvt_pk_bf16_f32 v{VV+t*4+i}, v{a}, v{a+1}")
    for i in range(4): A.e(f"v_mov_b32 v{232+i}, 0x3f803f80")
    A.e(f"""
    s_mul_i32 s34, s33, {26*1024}
    v_lshlrev_b32 v2, 4, v1
    v_add_u32 v2, s34, v2
    v_lshlrev_b32 v3, 2, v1
    v_add_u32 v3, s34, v3
    s_barrier
    """)
    pairs = []
    for tk in range(9):
        for tv in (tk-1, tk, tk+1):
            if 0 <= tv < 9: pairs.append((2*tk+tv, tk, tv))
    ms = [f"{M16} {vr(ACC+(25+tk)*4,4)}, v[232:235], {vr(PK+tk*4,4)}, 0" for tk in range(9)]
    ms += [f"{M16} {vr(ACC+p*4,4)}, {vr(PK+tk*4,4)}, {vr(VV+tv*4,4)}, 0" for p, tk, tv in pairs]
    accs = [ACC+(25+tk)*4 for tk in range(9)] + [ACC+p*4 for p, tk, tv in pairs]
    def dmp(acc):
        p = (acc-ACC)//4
        if p < 25: return f"ds_write_b128 v2, {vr(acc,4)} offset:{p*1024}"
        return f"s_mov_b64 exec, 0xffff\nds_write_b32 v3, v{acc} offset:{25*1024+(p-25)*64}\ns_mov_b64 exec, -1"
    drain(A, ms, accs, dmp)
    A.e(f"""
    s_lshl_b32 s33, s32, 7
    s_lshl_b32 s34, s31, 2
    s_add_u32 s33, s33, s34
    s_add_u32 s33, s33, {FL_PQ*128}
    s_waitcnt lgkmcnt(0)
    s_barrier
    s_cmp_lg_u32 s30, 0
    s_cbranch_scc1 {fin}
    """)
    set_flag(A, "s33", FLS)
    A.e(f"s_branch {fin}")
    A.lab(lq)
    A.sbase = 2
    A.e(f"s_load_dwordx4 s[8:11], s[0:1], {KA_WQKV}")
    setup()
    A.srd_off(12, 76, 77, WS_XN, SZ_X)
    A.srd_off(20, 76, 77, WS_PQ, SZ_X)
    A.srd_off(24, 76, 77, WS_KV, SZ_KV)
    A.e(f"""
    v_lshlrev_b32 v20, 4, v1
    s_lshl_b32 s34, s33, 15
    v_add_u32 v20, s34, v20
    s_mul_i32 s52, s33, 7
    s_mov_b32 s38, {(2**32+17)//18}
    """)
    for t in range(7):
        A.e(f"s_add_u32 s35, s52, {t}\ns_min_u32 s35, s35, 26")
        A.sdiv("s36", "s35", 9, "s37")
        A.e(f"""
        s_mul_i32 s37, s36, 9
        s_sub_u32 s37, s35, s37
        s_lshl_b32 s37, s37, 6
        v_add_u32 v3, s37, v1
        v_mul_hi_u32 v4, v3, s38
        v_mul_u32_u24 v4, {3456-288}, v4
        v_lshl_add_u32 v4, v3, 4, v4
        s_mul_i32 s36, s36, 1152
        v_add_u32 v{21+t}, s36, v4
        """)
    A.e(f"""
    s_lshl_b32 s53, s33, 11
    s_lshl_b32 s54, s52, 10
    s_add_u32 s54, s54, {QK_PB}
    s_lshl_b32 s55, s35, 10
    s_add_u32 s55, s55, {QK_PB}
    s_lshl_b32 s45, s32, 11
    s_mul_i32 s46, s31, 288
    s_mov_b32 s40, 0
    s_mov_b32 s41, 0
    s_waitcnt lgkmcnt(0)
    s_add_u32 s98, s98, 1
    """)
    A.srd(16, 8, 9, SZ_WQKV)
    flP = " sc1"
    def dma_groups(kinds="PW"):
        g = []
        if "P" in kinds:
            g.append(f"s_add_u32 m0, s41, s53\ns_nop 0\nbuffer_load_dwordx4 v20, s[12:15], s45 offen{flP} lds")
            g.append(f"buffer_load_dwordx4 v20, s[12:15], s45 offen offset:1024{flP} lds")
        g.append(f"s_add_u32 m0, s41, s54\ns_add_u32 s42, s41, s54\nbuffer_load_dwordx4 v21, s[16:19], s46 offen lds")
        for t in range(1, 6):
            g.append(f"s_add_u32 m0, s42, {t*1024}\ns_nop 0\nbuffer_load_dwordx4 v{21+t}, s[16:19], s46 offen lds")
        g.append(f"""s_add_u32 m0, s41, s55
        s_add_u32 s40, s40, 1
        buffer_load_dwordx4 v27, s[16:19], s46 offen lds
        s_add_u32 s41, s41, {QK_ST}
        s_cmp_eq_u32 s41, {QK_NS*QK_ST}
        s_cselect_b32 s41, 0, s41
        s_add_u32 s45, s45, 131072
        s_add_u32 s46, s46, {32*3456}
        s_cmp_ge_u32 s40, 18
        s_cselect_b32 s45, 0x7ff00000, s45
        s_cselect_b32 s46, 0x7ff00000, s46""")
        return g
    for j in range(3):
        for x in dma_groups("W"): A.e(x)
    A.e(f"s_barrier\nv_mov_b32 v29, {OOB}")
    A.e(f"s_mov_b32 s34, {(2**32+341)//342}\ns_mul_i32 s35, s32, 171\ns_sub_u32 s35, s35, 256\nv_add_u32 v18, s35, v0")
    for r in range(11):
        A.e(f"""
        v_add_u32 v2, {256*r}, v18
        v_subrev_u32 v3, 2736, v2
        v_min_u32 v2, v2, v3
        v_mul_hi_u32 v3, v2, s34
        v_mul_u32_u24 v4, 342, v3
        v_sub_u32 v4, v2, v4
        v_mul_hi_u32 v5, v4, s38
        v_mul_u32_u24 v6, 18, v5
        v_sub_u32 v6, v4, v6
        v_mul_u32_u24 v7, 18, v3
        v_add_u32 v8, v7, v6
        v_add_u32 v9, v7, v5
        v_lshrrev_b32 v15, 4, v8
        v_lshrrev_b32 v16, 4, v9
        v_lshl_add_u32 v16, v15, 1, v16
        v_lshlrev_b32 v16, 10, v16
        v_bfe_u32 v17, v8, 2, 2
        v_lshl_add_u32 v16, v17, 8, v16
        v_and_b32 v9, 15, v9
        v_lshl_add_u32 v16, v9, 4, v16
        v_and_b32 v17, 3, v8
        v_lshl_add_u32 v16, v17, 2, v16
        v_cmp_eq_u32 vcc, 18, v5
        v_lshlrev_b32 v8, 2, v8
        v_add_u32 v8, {25*1024}, v8
        v_cndmask_b32 v16, v16, v8, vcc
        v_min_u32 v{160+r}, {26*1024-4}, v16
        v_mul_u32_u24 v3, 1600, v3
        v_mul_u32_u24 v5, 80, v5
        v_cmp_gt_u32 vcc, {2736-256*r+256}, v0
        v_add_u32 v3, v3, v5
        v_lshl_add_u32 v3, v6, 2, v3
        v_cndmask_b32 v{176+r}, v29, v3, vcc
        """)
    A.e("s_barrier")
    lw4 = A.newlab("qw4"); lw4b = A.newlab("qw4b")
    A.e(f"""
    s_cmp_lg_u32 s30, 4
    s_cbranch_scc1 {lw4}
    v_lshrrev_b32 v3, 1, v1
    v_and_b32 v8, 1, v1
    v_lshlrev_b32 v3, 7, v3
    v_lshl_add_u32 v3, v8, 4, v3
    v_add_u32 v8, {FL_LN*128}, v3
    """)
    poll(A, 8, FLS, 4, -1, -1)
    A.e(f"s_cmp_lg_u32 s99, 0\ns_cbranch_scc1 {lw4}\ns_mov_b32 s34, {FL_EPOCH*128}")
    set_flag(A, "s34", FLS)
    A.lab(lw4)
    A.e("s_barrier")
    for j in range(3):
        A.e(f"""
        s_add_u32 m0, s53, {j*QK_ST}
        s_sub_u32 s34, s45, {(3-j)*131072}
        buffer_load_dwordx4 v20, s[12:15], s34 offen{flP} lds
        buffer_load_dwordx4 v20, s[12:15], s34 offen offset:1024{flP} lds
        """)
    npf = 0
    A.e(f"""
    s_mul_i32 s34, s29, 648
    s_sub_u32 s34, s34, 256
    s_mul_i32 s36, s31, 288
    s_and_b32 s36, s36, 0xffffff80
    s_mov_b32 s37, {(2**32+8)//9}
    s_mov_b32 s39, {(2**32+2)//3}
    v_mov_b32 v29, {OOB}
    """)
    if opt.get("pf_wqkv", True):
        for j in range(3):
            A.e(f"""
            v_add_u32 v3, s34, v0
            v_add_u32 v3, {256*j}, v3
            v_mul_hi_u32 v4, v3, s37
            v_mul_u32_u24 v5, 9, v4
            v_sub_u32 v5, v3, v5
            v_mul_hi_u32 v6, v5, s39
            v_mul_u32_u24 v4, 3456, v4
            v_lshl_add_u32 v4, v5, 7, v4
            v_mul_u32_u24 v6, {1152-384}, v6
            v_add_u32 v4, v4, v6
            """)
            if j == 2: A.e(f"v_cmp_gt_u32 vcc, {256+648-512}, v0\ns_nop 1\nv_cndmask_b32 v4, v29, v4, vcc")
            A.e("buffer_load_dword v28, v4, s[16:19], s36 offen"); npf += 1
        A.srd(60, 10, 11, SZ_WO)
        A.e(f"""
        v_subrev_u32 v3, 256, v0
        v_lshlrev_b32 v4, 7, v3
        v_cmp_gt_u32 vcc, 81, v3
        s_lshl_b32 s34, s28, 3
        s_add_u32 s34, s34, s29
        s_mul_i32 s34, s34, {81*128}
        v_cndmask_b32 v4, v29, v4, vcc
        buffer_load_dword v28, v4, s[60:63], s34 offen
        """); npf += 1
    if opt.get("pf_code", True):
        A.e(f"s_lshl_b32 s34, s29, 6\ns_and_b32 s34, s34, 0x100\ns_sub_u32 s34, s34, 256\nv_add_u32 v30, s34, v0")
        code_prefetch(A, KNAME, "L_code_end", "v30", "v30", 60, backward=True); npf += 1
    A.e(f"s_setprio {opt.get('q_prio', 1)}")
    QACC = 32; QSB = 104; QRB = 120
    def mf_q(j, sb, rb, first):
        return [f"{M16} {vr(QACC+(j*2+nt)*4,4)}, {vr(rb,4)}, {vr(sb+nt*4,4)}, {'0' if first else vr(QACC+(j*2+nt)*4,4)}" for nt in range(2)]
    consumer_ring(A, "q", 18, QK_NS, QK_ST, [(13,10),(14,11)], stat, 8, QSB, [wfrag(0,t) for t in range(9)],
                  9, QRB, opt.get("q_look", 5), mf_q, "s44", "s47", pre_bar="s_waitcnt vmcnt(9)", post_bar=dma_groups,
                  pre_bar0=f"s_waitcnt vmcnt({4+npf})", pre_bar1=f"s_waitcnt vmcnt({2+npf})", pre_bar2=f"s_waitcnt vmcnt({9+npf})")
    A.e("s_setprio 0\ns_waitcnt vmcnt(0)")
    A.e(f"""
    s_barrier
    v_and_b32 v2, 15, v1
    v_lshrrev_b32 v3, 4, v1
    v_mul_u32_u24 v2, 1152, v2
    v_lshrrev_b32 v4, 1, v3
    v_lshl_add_u32 v2, v4, 4, v2
    v_and_b32 v3, 1, v3
    v_lshl_add_u32 v4, v3, 5, v2
    v_add_u32 v5, {16*1152}, v4
    v_mul_u32_u24 v3, {16*1152}, v3
    v_add_u32 v3, v3, v2
    s_lshl_b32 s34, s32, 7
    s_lshl_b32 s35, s33, 5
    s_add_u32 s34, s34, s35
    s_mul_i32 s34, s34, 1152
    s_mul_i32 s35, s31, 288
    s_add_u32 s34, s34, s35
    """)
    PQR = 192
    def dst(t, nt):
        if t < 8: b = PQR + (t//2)*8 + nt*4 + (t % 2)*2
        else: b = PQR + 32 + nt*2
        return [b, b+1]
    for t in range(9):
        phi_pack(A, QACC + t*8, dst(t,0) + dst(t,1), 232, opt)
        if t % 2 == 1 or t == 8:
            A.e("s_nop 1")
            for nt in range(2 if t < 8 else 1):
                b = dst(t-1, nt)[0] if t < 8 else PQR + 32
                A.e(f"v_permlane16_swap_b32 v{b}, v{b+2}\nv_permlane16_swap_b32 v{b+1}, v{b+3}")
                va = (4+nt) if t < 8 else 3
                A.e(f"s_nop 0\nbuffer_store_dwordx4 {vr(b,4)}, v{va}, s[20:23], s34 offen offset:{(t//2)*64} sc1")
    A.e(f"s_mul_i32 s34, s31, 12800\ns_waitcnt vmcnt(0)\ns_barrier")
    for h in range(4):
        rs = list(range(3*h, min(11, 3*h+3)))
        for r in rs:
            k = 32 + 4*(r % 3)
            A.e(f"""
            v_add_u32 v17, {2*26*1024}, v{160+r}
            ds_read_b32 v{k}, v{160+r}
            ds_read_b32 v{k+1}, v{160+r} offset:{26*1024}
            ds_read_b32 v{k+2}, v17
            ds_read_b32 v{k+3}, v17 offset:{26*1024}
            """)
        for n, r in enumerate(rs):
            k = 32 + 4*(r % 3)
            A.e(f"""
            s_waitcnt lgkmcnt({4*(len(rs)-1-n)})
            v_add_f32 v{k}, v{k}, v{k+1}
            v_add_f32 v{k+2}, v{k+2}, v{k+3}
            v_add_f32 v{48+r}, v{k}, v{k+2}
            buffer_atomic_add_f32 v{48+r}, v{176+r}, s[24:27], s34 offen
            """)
    A.e(f"""
    s_lshl_b32 s79, s32, 7
    s_lshl_b32 s34, s31, 4
    s_add_u32 s79, s79, s34
    s_lshl_b32 s34, s33, 2
    s_add_u32 s79, s79, s34
    s_add_u32 s79, s79, {FL_QK*128}
    """)
    A.lab(fin)
    A.e("s_barrier")

def attn(A, opt, done):
    A.sbase = 4
    A.e(f"s_load_dwordx2 s[10:11], s[0:1], {KA_WO}\ns_load_dwordx2 s[70:71], s[0:1], {KA_X}")
    ids(A)
    A.e(f"""
    s_and_b32 s31, s28, 1
    s_lshl_b32 s31, s31, 4
    s_bfe_u32 s33, s28, 0x10001
    s_lshl_b32 s33, s33, 3
    s_add_u32 s31, s31, s33
    s_and_b32 s33, s29, 6
    s_add_u32 s31, s31, s33
    s_lshr_b32 s33, s28, 2
    s_add_u32 s31, s31, s33
    s_and_b32 s32, s29, 1
    s_mul_i32 s35, s31, {64*1152}
    s_waitcnt lgkmcnt(0)
    """)
    A.srd_off(12, 76, 77, WS_PQ, SZ_X)
    A.srd_off(60, 76, 77, WS_KV, SZ_KV)
    A.srd(16, 10, 11, SZ_WO)
    A.srd(20, 70, 71, SZ_X)
    A.srd_off(24, 76, 77, WS_AP, SZ_X)
    def xloads():
        A.e(f"s_mul_i32 s57, s32, 576\ns_add_u32 s57, s57, s35\ns_mov_b32 s36, {(2**32+35)//36}")
        for r in range(5):
            A.e(f"""
            v_add_u32 v3, {512*r}, v0
            v_mul_hi_u32 v4, v3, s36
            v_lshlrev_b32 v3, 4, v3
            v_lshl_add_u32 v{230+r}, v4, 4, v3
            v_mul_u32_u24 v4, 576, v4
            v_add_u32 v3, v3, v4
            buffer_load_dwordx4 {vr(236+4*r,4)}, v3, s[20:23], s57 offen
            """)
    def dep():
        A.e(f"s_mov_b32 s36, {(2**32+72)//73}")
        for k in range(19):
            A.e(f"""
            v_add_u32 v3, {256*k}, v0
            v_mul_hi_u32 v4, v3, s36
            v_sub_u32 v3, v3, v4
            v_lshlrev_b32 v{16+k}, 4, v3
            """)
        lk = A.newlab("atkv"); lj = A.newlab("atj")
        A.e(f"""
        s_cmp_ge_u32 s30, 4
        s_cbranch_scc1 {lk}
        s_lshr_b32 s36, s31, 1
        s_lshl_b32 s36, s36, 7
        s_add_u32 s36, s36, {FL_PQ*128}
        v_lshlrev_b32 v8, 2, v1
        v_add_u32 v8, s36, v8
        s_lshl_b32 s34, s30, 10
        """)
        poll(A, 8, FLS, 1, 15, 0)
        for k in range(19):
            l = A.newlab("atq")
            if k == 18: A.e(f"s_cmp_ge_u32 s30, 1\ns_cbranch_scc1 {l}")
            A.e(f"s_add_u32 m0, s34, {4096*k}\ns_nop 0\nbuffer_load_dwordx4 v{16+k}, s[12:15], s35 offen sc1 lds")
            if k == 18: A.lab(l)
        A.e(f"s_branch {lj}")
        A.lab(lk)
        A.e(f"""
        v_lshrrev_b32 v3, 2, v1
        v_and_b32 v8, 3, v1
        v_lshlrev_b32 v3, 7, v3
        v_lshl_add_u32 v3, v8, 4, v3
        v_add_u32 v8, {FL_QK*128}, v3
        s_lshl_b32 s34, s30, 10
        s_sub_u32 s34, s34, 4096
        v_lshlrev_b32 v2, 4, v0
        v_subrev_u32 v2, 4096, v2
        """)
        poll(A, 8, FLS, 4, -1, -1)
        for k in range(13):
            l = A.newlab("atk")
            if k == 12: A.e(f"s_cmp_ge_u32 s30, 6\ns_cbranch_scc1 {l}")
            A.e(f"s_add_u32 m0, s34, {KVB+4096*k}\ns_mov_b32 s37, {4096*k}\nbuffer_load_dwordx4 v2, s[60:63], s37 offen sc1 lds")
            if k == 12: A.lab(l)
        A.lab(lj)
        A.e("s_waitcnt vmcnt(0)\ns_barrier")
        ocalc(A, opt)
    fin = A.newlab("atfin"); cons = A.newlab("atcons")
    A.e(f"s_cmp_lt_u32 s30, 4\ns_cbranch_scc1 {cons}")
    A.e(f"s_mul_i32 {LR['bW']}, s32, 576\ns_mov_b32 {LR['K']}, 0")
    A.e(f"""
    s_sub_u32 s33, s30, 4
    s_lshl_b32 s34, s33, 8
    v_add_u32 v2, s34, v1
    s_lshl_b32 s50, s33, 12
    s_lshl_b32 s51, s33, 10
    s_add_u32 s51, s51, 16384
    s_cmp_lt_u32 s33, 2
    s_cselect_b32 s53, 1, 0
    s_lshl_b32 s34, s33, 6
    s_add_u32 s34, s34, 1024
    v_add_u32 v7, s34, v1
    s_mov_b32 s34, {(2**32+35)//36}
    """)
    for t in range(5):
        imm = t*1024 if t < 4 else 0
        A.e(f"v_add_u32 v3, {t*64}, v2" if t < 4 else "v_mov_b32 v3, v7")
        A.e(f"""
        v_mul_hi_u32 v4, v3, s34
        v_mul_u32_u24 v5, 36, v4
        v_sub_u32 v5, v3, v5
        v_bfe_u32 v6, v4, 3, 1
        v_lshlrev_b32 v6, 1, v6
        v_xor_b32 v5, v5, v6
        v_mul_u32_u24 v4, 1152, v4
        v_lshl_add_u32 v4, v5, 4, v4
        v_subrev_u32 v{10+t}, {imm}, v4
        """)
    A.e("s_waitcnt vmcnt(0)")
    set_flag(A, "s79", FLS)
    shared = A.newlab("atdep"); back_l = A.newlab("atbl"); back_c = A.newlab("atbc")
    def hook():
        A.e(f"s_branch {shared}")
        A.lab(back_l)
    loader(A, "at", [("s50", [(10+t, "s[16:19]", 'W', t*1024, "") for t in range(4)])], 18, AT_NS, AT_ST, 2, 0, 32*1152, 0, LR,
           hook=hook, opt_run=("s51", [(14, "s[16:19]", 'W', 0, "")]), sBig="s53", lds_base=OT)
    A.e(f"s_branch {fin}")
    A.lab(cons)
    A.lab(shared)
    xloads()
    dep()
    A.e(f"s_cmp_ge_u32 s30, 4\ns_cbranch_scc1 {back_l}")
    A.e(f"""
    s_and_b32 s33, s30, 1
    s_lshr_b32 s34, s30, 1
    v_and_b32 v2, 15, v1
    v_lshrrev_b32 v3, 4, v1
    s_lshl_b32 s35, s34, 5
    v_add_u32 v4, s35, v2
    v_mul_u32_u24 v9, {ESTR}, v4
    v_lshl_add_u32 v9, v3, 3, v9
    v_mul_u32_u24 v4, {OSTR}, v4
    v_lshl_add_u32 v13, v3, 4, v4
    v_subrev_u32 v13, 64, v13
    v_lshrrev_b32 v5, 2, v2
    v_lshl_add_u32 v4, v3, 3, v5
    v_mul_u32_u24 v4, 576, v4
    v_and_b32 v5, 3, v2
    v_lshl_add_u32 v4, v5, 3, v4
    s_mul_i32 s35, s33, 288
    s_add_u32 s36, s35, {AT_EP}
    v_add_u32 v9, s36, v9
    s_add_u32 s35, s35, {OT}
    v_add_u32 v4, s35, v4
    v_and_b32 v5, 1, v3
    v_lshlrev_b32 v5, 5, v5
    v_add_u32 v11, v4, v5
    v_sub_u32 v12, v4, v5
    s_cmp_eq_u32 s33, 0
    s_cbranch_scc1 L_atnoswap
    v_swap_b32 v11, v12
    L_atnoswap:
    """)
    ACC = 16; SB = 88; RB = 104
    stat = [(nt*4, [(4, 0, f"ds_read_b128 {{dst}}, v13 offset:{nt*16*OSTR}")]) for nt in range(2)]
    strm = []
    for t in range(9):
        va = 14 if t % 2 == 0 else 15
        strm.append([(2, 0, f"ds_read_b64_tr_b16 {{dst}}, v{va} offset:{t*32}"),
                     (2, 2, f"ds_read_b64_tr_b16 {{dst}}, v{va} offset:{t*32+4*576}")])
    def mf(j, sb, rb, first):
        return [f"{M16} {vr(ACC+(j*2+nt)*4,4)}, {vr(rb,4)}, {vr(sb+nt*4,4)}, {'0' if first else vr(ACC+(j*2+nt)*4,4)}" for nt in range(2)]
    consumer_ring(A, "at", 18, AT_NS, AT_ST, [(14,11),(15,12)], stat, 8, SB, strm, 9, RB, 5, mf, "s44", "s47",
                  addr_extra="v_add_u32 v13, 64, v13")
    A.e("s_nop 7")
    for t in range(9):
        for nt in range(2):
            a = ACC + (t*2+nt)*4; p = 140 + (t*2+nt)*2
            A.e(f"v_cvt_pk_bf16_f32 v{p}, v{a}, v{a+1}\nv_cvt_pk_bf16_f32 v{p+1}, v{a+2}, v{a+3}")
            A.e(f"ds_write_b64 v9, v[{p}:{p+1}] offset:{t*32+nt*16*ESTR}")
    A.e("s_waitcnt lgkmcnt(0)")
    A.lab(fin)
    A.e(f"""
    s_lshl_b32 s33, s31, 1
    s_add_u32 s33, s33, s32
    s_mul_i32 s34, s33, 36864
    s_lshl_b32 s33, s33, 7
    v_lshlrev_b32 v2, 4, v0
    s_barrier
    """)
    l4 = A.newlab("ate4")
    for r in range(4): A.e(f"v_add_u32 v{230+r}, {AT_EP}, v{230+r}\nds_read_b128 {vr(16+4*r,4)}, v{230+r}")
    A.e(f"v_add_u32 v234, {AT_EP}, v234\nv_min_u32 v234, {163840-16}, v234\nds_read_b128 {vr(32,4)}, v234")
    for r in range(5):
        if r == 4: A.e(f"s_cmp_ge_u32 s30, 4\ns_cbranch_scc1 {l4}")
        A.e(f"s_waitcnt lgkmcnt({4-r})")
        for i in range(4):
            a = 16 + 4*r + i; x = 236 + 4*r + i
            A.e(f"""
            v_lshlrev_b32 v40, 16, v{a}
            v_and_b32 v41, 0xffff0000, v{a}
            v_lshlrev_b32 v42, 16, v{x}
            v_and_b32 v43, 0xffff0000, v{x}
            v_pk_add_f32 v[40:41], v[40:41], v[42:43]
            v_cvt_pk_bf16_f32 v{a}, v40, v41
            """)
        A.e(f"s_add_u32 s35, s34, {8192*r}\nbuffer_store_dwordx4 {vr(16+4*r,4)}, v2, s[24:27], s35 offen sc1")
    A.lab(l4)
    A.e(f"""
    s_waitcnt vmcnt(0)
    s_barrier
    s_cmp_lg_u32 s30, 0
    s_cbranch_scc1 {done}
    """)
    set_flag(A, "s33", FLS)
    A.e(f"s_branch {done}")

def gen_fused(A, opt):
    kernel_head(A, KNAME)
    done = A.newlab("done"); la = A.newlab("arole"); g2 = A.newlab("g2"); at = A.newlab("at")
    A.e(f"""
    s_cmp_ge_u32 s2, 256
    s_cbranch_scc1 {done}_x
    """)
    A.stamp_init()
    A.e(f"""
    s_load_dwordx2 s[76:77], s[0:1], {KA_WS}
    s_load_dwordx2 s[4:5], s[0:1], {KA_X}
    s_mov_b32 s99, s2
    v_lshrrev_b32 v2, 6, v0
    v_and_b32 v1, 63, v0
    v_readfirstlane_b32 s100, v2
    s_waitcnt lgkmcnt(0)
    s_add_u32 s2, s76, {WS_FL + FL_EPOCH*128}
    s_addc_u32 s3, s77, 0
    s_load_dword s98, s[2:3], 0
    """)
    A.srd_off(72, 76, 77, WS_FL, SZ_FL)
    A.e(f"""
    v_mov_b32 v12, 0
    s_mov_b32 s79, 0
    s_cmp_lt_u32 s99, 64
    s_cbranch_scc1 {la}
    """)
    gemm1(A, opt, g2)
    A.lab(g2)
    gemm2(A, opt, done)
    A.lab(la)
    qkv(A, opt, at)
    A.lab(at)
    attn(A, opt, done)
    A.lab(done)
    A.stamp_out(0)
    A.lab(done + "_x")
    A.e("s_endpgm")
    kernel_desc(A, KNAME, 256, 102)
    return f"; @launch grid=(256,1,1) block=(512,1,1) lds=163840"
```

```python
from asm import *
from layout import *
import struct
def f2u(x): return struct.unpack("<I", struct.pack("<f", x))[0]

def reduce32(A, a, b):
    for n in (8,4,2,1):
        A.e(f"s_nop 1\nv_add_f32_dpp v{a}, v{a}, v{a} row_ror:{n} row_mask:0xf bank_mask:0xf")
    A.e(f"v_mov_b32 v{b}, v{a}\ns_nop 1\nv_permlane16_swap_b32 v{a}, v{b}\ns_nop 1\nv_add_f32 v{a}, v{a}, v{b}")

def layernorm(A, X, P, t0, t1, t2, t3, keep_f32):
    A.e(f"v_add_f32 v{t0}, v{X}, v{X+1}\nv_add_f32 v{t1}, v{X+2}, v{X+3}")
    for i in range(4,18,2):
        A.e(f"v_add_f32 v{t0}, v{t0}, v{X+i}\nv_add_f32 v{t1}, v{t1}, v{X+i+1}")
    A.e(f"v_add_f32 v{t0}, v{t0}, v{t1}")
    reduce32(A, t0, t1)
    A.e(f"v_mul_f32 v{t0}, {hex(f2u(1.0/576))}, v{t0}")
    A.e(f"v_sub_f32 v{t3}, v{X}, v{t0}\nv_mul_f32 v{t1}, v{t3}, v{t3}\nv_sub_f32 v{t3}, v{X+1}, v{t0}\nv_mul_f32 v{t2}, v{t3}, v{t3}")
    for i in range(2,18,2):
        A.e(f"v_sub_f32 v{t3}, v{X+i}, v{t0}\nv_fmac_f32 v{t1}, v{t3}, v{t3}\nv_sub_f32 v{t3}, v{X+i+1}, v{t0}\nv_fmac_f32 v{t2}, v{t3}, v{t3}")
    A.e(f"v_add_f32 v{t1}, v{t1}, v{t2}")
    reduce32(A, t1, t2)
    A.e(f"v_mul_f32 v{t1}, {hex(f2u(1.0/576))}, v{t1}")
    A.e(f"v_cvt_pk_bf16_f32 v{t2}, v{t0}, v{t1}")
    A.e(f"v_lshlrev_b32 v{t0}, 16, v{t2}\nv_and_b32 v{t1}, 0xffff0000, v{t2}")
    A.e(f"v_add_f32 v{t1}, {hex(f2u(1e-5))}, v{t1}")
    A.e(f"v_cvt_pk_bf16_f32 v{t1}, v{t1}, v{t1}\nv_and_b32 v{t1}, 0xffff0000, v{t1}")
    A.e(f"v_sqrt_f32 v{t1}, v{t1}\ns_nop 0")
    A.e(f"v_cvt_pk_bf16_f32 v{t1}, v{t1}, v{t1}\nv_and_b32 v{t1}, 0xffff0000, v{t1}")
    A.e(f"v_rcp_f32 v{t1}, v{t1}\ns_nop 0")
    for i in range(9):
        a, b = X+2*i, X+2*i+1
        A.e(f"v_sub_f32 v{a}, v{a}, v{t0}\nv_sub_f32 v{b}, v{b}, v{t0}")
        A.e(f"v_cvt_pk_bf16_f32 v{t2}, v{a}, v{b}")
        A.e(f"v_lshlrev_b32 v{a}, 16, v{t2}\nv_and_b32 v{b}, 0xffff0000, v{t2}")
        A.e(f"v_mul_f32 v{a}, v{a}, v{t1}\nv_mul_f32 v{b}, v{b}, v{t1}")
        A.e(f"v_cvt_pk_bf16_f32 v{P+i}, v{a}, v{b}")
        if keep_f32:
            A.e(f"v_lshlrev_b32 v{a}, 16, v{P+i}\nv_and_b32 v{b}, 0xffff0000, v{P+i}")

def code_prefetch(A, first, last_lab, vidx, vt, sb, backward=False):
    pc = A.newlab("pc")
    A.e(f"""
    s_getpc_b64 s[{sb}:{sb+1}]
    {pc}:
    {"s_sub_u32" if backward else "s_add_u32"} s{sb}, s{sb}, {f"{pc}-{first}" if backward else f"{first}-{pc}"}
    {"s_subb_u32" if backward else "s_addc_u32"} s{sb+1}, s{sb+1}, 0
    v_lshlrev_b32 {vt}, 7, {vidx}
    v_min_u32 {vt}, {last_lab}-{first}-4, {vt}
    global_load_dword {vt}, {vt}, s[{sb}:{sb+1}]
    """)

def k1_prefetch(A, opt):
    n = 0
    if opt.get("pf_code", True):
        A.e("s_and_b32 s30, s25, 1\ns_lshl_b32 s30, s30, 8\nv_add_u32 v60, s30, v0")
        code_prefetch(A, "gemm1_qkv_kernel", "L_code_end", "v60", "v60", 50); n += 1
    if opt.get("pf_wqkv", True):
        A.srd(44, 36, 37, SZ_WQKV)
        A.e("s_mul_i32 s30, s25, 162\nv_add_u32 v61, s30, v0")
        A.vdiv("v62", "v61", 9, "s30")
        A.e("v_mul_u32_u24 v63, 9, v62\nv_sub_u32 v61, v61, v63\nv_mul_u32_u24 v62, 3456, v62")
        A.vdiv("v63", "v61", 3, "s30")
        A.e(f"""
        v_mul_u32_u24 v59, 3, v63
        v_sub_u32 v61, v61, v59
        v_mul_u32_u24 v63, 1152, v63
        v_add_u32 v62, v62, v63
        v_lshl_add_u32 v62, v61, 7, v62
        v_mov_b32 v63, {OOB}
        v_cmp_gt_u32 vcc, 162, v0
        s_lshr_b32 s30, s24, 1
        s_mul_i32 s30, s30, 288
        s_and_b32 s30, s30, 0xffffff80
        v_cndmask_b32 v62, v63, v62, vcc
        buffer_load_dword v57, v62, s[44:47], s30 offen
        """); n += 1
        A.srd(44, 38, 39, SZ_WO)
        A.e(f"""
        v_lshlrev_b32 v62, 7, v0
        v_cmp_gt_u32 vcc, 21, v0
        s_mul_i32 s30, s2, {21*128}
        s_nop 0
        v_cndmask_b32 v62, v63, v62, vcc
        buffer_load_dword v57, v62, s[44:47], s30 offen
        """); n += 1
    rows = opt.get("pf_w1_rows", 0)
    if rows:
        A.srd(44, 40, 41, SZ_W1)
        tot = rows*9//32
        fl = opt.get("pf_w1_fl", " nt")
        A.e(f"s_mul_i32 s30, s24, 1152\ns_mul_i32 s33, s25, 9216\ns_add_u32 s33, s33, s30\nv_mov_b32 v63, {OOB}")
        for j in range((tot+255)//256):
            A.e(f"v_add_u32 v61, {j*256}, v0")
            A.vdiv("v62", "v61", 9, "s30")
            A.e(f"""
            v_mul_u32_u24 v58, 9, v62
            v_sub_u32 v58, v61, v58
            v_mul_u32_u24 v62, {32*9216}, v62
            v_lshl_add_u32 v62, v58, 7, v62
            v_cmp_gt_u32 vcc, {tot}, v61
            s_nop 1
            v_cndmask_b32 v62, v63, v62, vcc
            buffer_load_dword v57, v62, s[44:47], s33 offen{fl}
            """); n += 1
    return n

HSTR = 1216
def ln_body(A, opt, wgreg="s2"):
    st = opt.get("ln_st", "")
    LB = opt.get("ln_lds", 0)
    A.e(f"""
    v_and_b32 v2, 31, v0
    v_lshrrev_b32 v3, 5, v0
    v_mul_u32_u24 v5, 1152, v3
    v_lshl_add_u32 v5, v2, 2, v5
    s_mul_i32 s28, {wgreg}, 9216
    """)
    if not opt.get("fused"): A.e("s_waitcnt lgkmcnt(0)")
    A.srd(8, 4, 5, SZ_X)
    for i in range(9):
        A.e(f"buffer_load_dword v{10+i}, v5, s[8:11], s28 offen offset:{128*i}")
    A.srd_off(12, 6, 7, WS_XN, SZ_X)
    A.srd_off(16, 6, 7, WS_HT, SZ_X)
    A.srd_off(20, 6, 7, WS_KV, SZ_KV)
    npf = 0 if opt.get('fused') else k1_prefetch(A, opt)
    A.e(f"""
    v_mul_u32_u24 v9, {HSTR}, v3
    v_lshl_add_u32 v9, v2, 2, v9
    v_mov_b32 v40, 0
    v_lshlrev_b32 v44, 2, v0
    v_mov_b32 v45, {OOB}
    v_cmp_gt_u32 vcc, 50, v0
    s_mul_i32 s30, {wgreg}, 200
    s_nop 0
    v_cndmask_b32 v44, v45, v44, vcc
    buffer_store_dword v40, v44, s[20:23], s30 offen{st}
    """)
    if not opt.get('fused'):
        A.srd_off(20, 6, 7, WS_FL, SZ_FL)
        A.e(f"""
        v_cmp_gt_u32 vcc, 64, v0
        s_lshl_b32 s30, {wgreg}, 8
        v_lshlrev_b32 v44, 2, v0
        v_cndmask_b32 v44, v45, v44, vcc
        buffer_store_dword v40, v44, s[20:23], s30 offen{st}
        """)
        npf += 1
    if LB: A.e(f"v_add_u32 v9, {LB}, v9")
    A.e(f"s_waitcnt vmcnt({min(63, 1+npf)})")
    A.stamp(1)
    for i in range(9):
        A.e(f"v_lshlrev_b32 v{20+2*i}, 16, v{10+i}\nv_and_b32 v{21+2*i}, 0xffff0000, v{10+i}")
    layernorm(A, 20, 10, 40, 41, 42, 43, True)
    for i in range(9):
        A.e(f"ds_write_b32 v9, v{10+i} offset:{8*HSTR+128*i}")
    layernorm(A, 20, 46, 40, 41, 42, 43, False)
    for i in range(9):
        A.e(f"ds_write_b32 v9, v{46+i} offset:{128*i}")
    A.e(f"""
    v_bfe_u32 v7, v0, 2, 2
    v_mul_u32_u24 v7, {HSTR}, v7
    v_lshrrev_b32 v8, 4, v0
    v_lshl_add_u32 v7, v8, 5, v7
    v_and_b32 v8, 3, v0
    v_lshl_add_u32 v7, v8, 3, v7
    v_and_b32 v8, 7, v0
    v_mul_u32_u24 v6, {HSTR}, v8
    v_lshlrev_b32 v4, 4, v8
    v_lshrrev_b32 v8, 5, v0
    v_lshl_add_u32 v6, v8, 6, v6
    v_bfe_u32 v8, v0, 3, 2
    v_lshl_add_u32 v6, v8, 3, v6
    v_lshrrev_b32 v8, 3, v0
    v_lshl_add_u32 v4, v8, 15, v4
    v_lshlrev_b32 v5, 4, v0
    v_lshrrev_b32 v8, 6, v0
    s_lshl_b32 s32, {wgreg}, 7
    v_readfirstlane_b32 s31, v8
    """)
    if LB: A.e(f"v_add_u32 v6, {LB}, v6\nv_add_u32 v7, {LB}, v7")
    A.e("s_waitcnt lgkmcnt(0)\ns_barrier")
    skip = A.newlab("k1skip")
    for r in range(3):
        if r == 2:
            A.e(f"s_cmp_lg_u32 s31, 0\ns_cbranch_scc1 {skip}")
        b = 20 + 8*r
        A.e(f"ds_read_b64_tr_b16 v[{b}:{b+1}], v7 offset:{512*r}\nds_read_b64_tr_b16 v[{b+2}:{b+3}], v7 offset:{512*r+4*HSTR}")
        A.e(f"ds_read_b64 v[{b+4}:{b+5}], v6 offset:{8*HSTR+512*r}\nds_read_b64 v[{b+6}:{b+7}], v6 offset:{8*HSTR+512*r+32}")
        A.e(f"""
        s_add_u32 s33, s28, {4096*r}
        s_add_u32 s30, s32, {32*32768*r}
        s_waitcnt lgkmcnt(2)
        buffer_store_dwordx4 v[{b}:{b+3}], v5, s[16:19], s33 offen{st}
        s_waitcnt lgkmcnt(0)
        buffer_store_dwordx4 v[{b+4}:{b+7}], v4, s[12:15], s30 offen{st}
        """)
    A.lab(skip)

def gen_k1(A, name, opt):
    kernel_head(A, name)
    done = A.newlab("k1done")
    A.e(f"""
    s_cmp_ge_u32 s2, 256
    s_cbranch_scc1 {done}_x
    """)
    A.stamp_init()
    A.e(f"""
    s_load_dwordx2 s[4:5], s[0:1], {KA_X}
    s_load_dwordx2 s[6:7], s[0:1], {KA_WS}
    s_load_dwordx4 s[36:39], s[0:1], {KA_WQKV}
    s_load_dwordx2 s[40:41], s[0:1], {KA_W1}
    s_and_b32 s24, s2, 7
    s_lshr_b32 s25, s2, 3
    """)
    ln_body(A, opt)
    A.lab(done)
    A.stamp_out(0)
    A.lab(done + "_x")
    A.e("s_endpgm")
    kernel_desc(A, name, 64, 102)
    return f"; @launch kernel={name} grid=(256,1,1) block=(256,1,1) lds={16*HSTR}"
```

```python
from asm import *
from layout import *
from core import *
from k1 import f2u, code_prefetch
import math

LR = dict(K="s40", Cnt="s41", Lo="s42", Hi="s43", Slot="s44", P="s45", W="s46", J="s47", bP="s48", bW="s49")

def gelu8(A, X, T, vk1, sk2):
    for i in range(0, 8, 2): A.e(f"v_pk_mul_f32 v[{T+i}:{T+i+1}], v[{X+i}:{X+i+1}], v[{X+i}:{X+i+1}]")
    for i in range(8): A.e(f"v_fma_f32 v{T+i}, v{T+i}, {sk2}, v{vk1}")
    for i in range(0, 8, 2): A.e(f"v_pk_mul_f32 v[{T+i}:{T+i+1}], v[{T+i}:{T+i+1}], v[{X+i}:{X+i+1}]")
    for i in range(8): A.e(f"v_exp_f32 v{T+i}, v{T+i}")
    for i in range(8): A.e(f"v_add_f32 v{T+i}, 1.0, v{T+i}")
    for i in range(8): A.e(f"v_rcp_f32 v{T+i}, v{T+i}")
    A.e("s_nop 0")
    for i in range(0, 8, 2): A.e(f"v_pk_mul_f32 v[{X+i}:{X+i+1}], v[{X+i}:{X+i+1}], v[{T+i}:{T+i+1}]")

G1_PB = 144*128; G1_WB = 64*192; G1_ST = G1_PB + G1_WB; G1_NS = 4

def gemm1(A, opt, done):
    A.e(f"""
    s_lshr_b32 s31, s29, 2
    s_mul_i32 s32, s28, 6
    s_add_u32 s31, s31, s32
    s_and_b32 s32, s29, 3
    """)
    def bias_loads():
        A.srd_off(20, 4, 5, WS_U, SZ_U)
        A.srd(24, 8, 9, SZ_B1)
        A.e("v_lshrrev_b32 v2, 4, v1\nv_lshlrev_b32 v2, 3, v2")
        for r in range(4):
            A.e(f"s_add_u32 s33, s30, {8*r}")
            A.sdiv("s34", "s33", 9, "s35")
            A.e(f"s_mul_i32 s35, s31, 192\ns_lshl_b32 s34, s34, 6\ns_add_u32 s34, s34, s35")
            A.e(f"buffer_load_dwordx2 v[{240+4*r}:{241+4*r}], v2, s[24:27], s34 offen")
            A.e(f"buffer_load_dwordx2 v[{242+4*r}:{243+4*r}], v2, s[24:27], s34 offen offset:32")
    epi = A.newlab("g1epi"); cons = A.newlab("g1cons")
    A.e(f"s_cmp_lt_u32 s30, 4\ns_cbranch_scc1 {cons}")
    A.srd_off(12, 4, 5, WS_HT, SZ_X)
    A.srd(16, 6, 7, SZ_W1)
    CL = opt.get("g1_cl", 8); nseg = opt.get("g1_nseg", 4)
    A.e(f"s_mul_i32 {LR['bP']}, s32, 2304\ns_mul_i32 {LR['bW']}, s31, 192")
    if nseg > 1:
        A.e(f"s_lshr_b32 s33, s29, 2\ns_add_u32 s33, s33, s32\ns_and_b32 s33, s33, {nseg-1}\ns_mul_i32 {LR['K']}, s33, {CL//nseg}")
    else: A.e(f"s_mov_b32 {LR['K']}, 0"); CL = 0
    flP = opt.get("g1_flP", ""); flW = opt.get("g1_flW", "")
    A.e(f"""
    s_sub_u32 s33, s30, 4
    s_mul_i32 s34, s33, 192
    v_add_u32 v2, s34, v1
    s_lshl_b32 s34, s33, 8
    v_add_u32 v7, s34, v1
    s_mul_i32 s50, s33, 3072
    s_add_u32 s50, s50, {G1_PB}
    s_lshl_b32 s51, s33, 12
    s_lshl_b32 s52, s33, 10
    s_add_u32 s52, s52, 16384
    s_cmp_lt_u32 s33, 2
    s_cselect_b32 s53, 1, 0
    s_mov_b32 s34, {(2**32+11)//12}
    s_mov_b32 s35, {(2**32+143)//144}
    """)
    for t in range(3):
        A.e(f"""
        v_add_u32 v3, {t*64}, v2
        v_mul_hi_u32 v4, v3, s34
        v_mul_u32_u24 v5, 12, v4
        v_sub_u32 v5, v3, v5
        v_bfe_u32 v6, v4, 3, 1
        v_lshlrev_b32 v6, 1, v6
        v_xor_b32 v5, v5, v6
        v_mul_u32_u24 v4, 9216, v4
        v_lshl_add_u32 v4, v5, 4, v4
        v_subrev_u32 v{10+t}, {t*1024}, v4
        """)
    for t in range(4):
        A.e(f"""
        v_add_u32 v3, {t*64}, v7
        v_mul_hi_u32 v4, v3, s35
        v_mul_u32_u24 v4, 6912, v4
        v_lshl_add_u32 v{13+t}, v7, 4, v4
        """)
    A.e(f"""
    s_lshl_b32 s36, s33, 6
    s_add_u32 s36, s36, 1024
    v_add_u32 v3, s36, v1
    v_lshlrev_b32 v3, 4, v3
    v_add_u32 v17, {7*6912}, v3
    """)
    runs = [("s50", [(10+t, "s[16:19]", 'W', t*1024, flW) for t in range(3)]),
            ("s51", [(13+t, "s[12:15]", 'P', t*1024, flP) for t in range(4)])]
    loader(A, "g1", runs, 32, G1_NS, G1_ST, 1, 8*9216, 64*9216, CL, LR,
           opt_run=("s52", [(17, "s[12:15]", 'P', 0, flP)]), sBig="s53")
    bias_loads()
    if opt.get("pf_code3", True):
        A.e("v_subrev_u32 v3, 256, v0")
        code_prefetch(A, "gemm2_attn_kernel", "L_code_end", "v3", "v3", 52)
    A.e(f"s_branch {epi}")
    A.lab(cons)
    bias_loads()
    A.e(f"""
    s_and_b32 s33, s30, 1
    s_lshr_b32 s34, s30, 1
    v_and_b32 v2, 15, v1
    v_lshrrev_b32 v3, 4, v1
    s_lshl_b32 s35, s33, 2
    v_add_u32 v4, s35, v3
    v_mul_u32_u24 v4, 2304, v4
    v_lshl_add_u32 v10, v2, 4, v4
    s_lshl_b32 s35, s33, 5
    v_lshlrev_b32 v4, 3, v3
    v_add_u32 v4, s35, v4
    v_lshrrev_b32 v5, 2, v2
    v_add_u32 v4, v4, v5
    v_mul_u32_u24 v4, 192, v4
    v_and_b32 v5, 3, v2
    v_lshl_add_u32 v4, v5, 3, v4
    s_mul_i32 s35, s34, 96
    s_add_u32 s35, s35, {G1_PB}
    v_add_u32 v4, s35, v4
    v_and_b32 v5, 1, v3
    v_lshlrev_b32 v5, 5, v5
    v_add_u32 v11, v4, v5
    v_sub_u32 v12, v4, v5
    s_cmp_eq_u32 s34, 0
    s_cbranch_scc1 L_g1noswap
    v_swap_b32 v11, v12
    L_g1noswap:
    """)
    ACC = 16; FB = 128; NF = 48
    frags = []
    for mt in range(3):
        va = 14 if mt != 1 else 15
        frags.append((mt*4, [(2, 0, f"ds_read_b64_tr_b16 {{dst}}, v{va} offset:{mt*32}"),
                             (2, 2, f"ds_read_b64_tr_b16 {{dst}}, v{va} offset:{mt*32+768}")]))
    for nt in range(9):
        frags.append((12+nt*4, [(4, 0, f"ds_read_b128 {{dst}}, v13 offset:{nt*256}")]))
    mf = [(ACC + (mt*9+nt)*4, mt*4, 12+nt*4) for nt in range(9) for mt in range(3)]
    A.e(f"""
    s_mul_i32 s35, s33, 55296
    s_mul_i32 s36, s34, 27648
    s_add_u32 s35, s35, s36
    v_lshlrev_b32 v9, 4, v1
    v_add_u32 v9, s35, v9
    """)
    consumer_full(A, "g1", 32, G1_NS, G1_ST, [(13,10),(14,11),(15,12)], frags, NF, FB, mf, "s44", "s47",
                  dump=lambda acc: f"ds_write_b128 v9, {vr(acc,4)} offset:{(acc-ACC)//4*1024}")
    A.e("s_waitcnt lgkmcnt(0)")
    A.lab(epi)
    k1 = -2.0*math.sqrt(2.0/math.pi)*math.log2(math.e); k2 = k1*0.044715
    st = opt.get("u_st", "")
    A.e(f"""
    v_and_b32 v2, 15, v1
    v_lshrrev_b32 v3, 4, v1
    v_mul_u32_u24 v4, 9216, v3
    v_lshl_add_u32 v4, v2, 4, v4
    v_lshlrev_b32 v5, 4, v1
    s_mov_b32 s50, {hex(f2u(k2))}
    v_mov_b32 v8, {hex(f2u(k1))}
    """)
    for r in range(4):
        A.e(f"s_add_u32 s33, s30, {8*r}")
        A.sdiv("s34", "s33", 9, "s35")
        A.e(f"""
        s_mul_i32 s35, s34, 9
        s_sub_u32 s35, s33, s35
        s_mul_i32 s36, s34, 18432
        s_lshl_b32 s37, s35, 10
        s_add_u32 s{60+r}, s36, s37
        s_mul_i32 s36, s31, 3
        s_add_u32 s36, s36, s34
        s_mul_i32 s36, s36, {4*9216}
        s_mul_i32 s37, s32, 2304
        s_add_u32 s36, s36, s37
        s_lshl_b32 s37, s35, 8
        s_add_u32 s{64+r}, s36, s37
        """)
    A.e("s_barrier")
    l3 = A.newlab("g1e3");
    def rd(r):
        b = 16 + 16*r
        A.e(f"""
        v_add_u32 v6, s{60+r}, v5
        ds_read_b128 v[{b}:{b+3}], v6
        ds_read_b128 v[{b+4}:{b+7}], v6 offset:9216
        ds_read_b128 v[{b+8}:{b+11}], v6 offset:55296
        ds_read_b128 v[{b+12}:{b+15}], v6 offset:64512
        """)
    def fin(r, wait):
        b = 16 + 16*r; bb = 240 + 4*r; T = 96
        for i in range(4):
            A.e(f"v_lshlrev_b32 v{T+2*i}, 16, v{bb+i}\nv_and_b32 v{T+1+2*i}, 0xffff0000, v{bb+i}")
        A.e(f"s_waitcnt lgkmcnt({wait})")
        for i in range(4): A.e(f"v_pk_add_f32 v[{b+2*i}:{b+2*i+1}], v[{b+2*i}:{b+2*i+1}], v[{b+8+2*i}:{b+9+2*i}]")
        for i in range(4): A.e(f"v_pk_add_f32 v[{b+2*i}:{b+2*i+1}], v[{b+2*i}:{b+2*i+1}], v[{T+2*i}:{T+1+2*i}]")
        gelu8(A, b, b+8, 8, "s50")
        o = 104 + 4*r
        for i in range(4): A.e(f"v_cvt_pk_bf16_f32 v{o+i}, v{b+2*i}, v{b+1+2*i}")
        A.e(f"buffer_store_dwordx4 v[{o}:{o+3}], v4, s[20:23], s{64+r} offen{st}")
    for r in range(3): rd(r)
    A.e("s_waitcnt vmcnt(0)")
    fin(0, 8)
    A.e(f"s_cmp_ge_u32 s30, 3\ns_cbranch_scc1 {l3}")
    rd(3)
    fin(1, 8); fin(2, 4); fin(3, 0)
    A.e(f"s_branch {done}")
    A.lab(l3)
    fin(1, 4); fin(2, 0)
    A.e(f"s_branch {done}")

H1_PB = 18432; H1_WB = 64*384; H1_ST = H1_PB + H1_WB; H1_NS = 3
SZ_EX1 = 192*55296
def gemm1_split(A, opt, done):
    A.e(f"""
    s_lshr_b32 s31, s29, 2
    s_lshr_b32 s32, s28, 1
    s_mul_i32 s32, s32, 6
    s_add_u32 s31, s31, s32
    s_and_b32 s32, s29, 3
    s_and_b32 s57, s28, 1
    """)
    def pre_epi():
        A.srd_off(20, 4, 5, WS_U, SZ_U)
        A.srd(24, 8, 9, SZ_B1)
        A.srd_off(68, 4, 5, WS_EX1, SZ_EX1)
        A.srd_off(72, 4, 5, WS_FL, SZ_FL)
        A.e(f"""
        s_lshl_b32 s58, s31, 1
        s_add_u32 s58, s58, s57
        s_lshl_b32 s59, s31, 2
        s_add_u32 s59, s59, s32
        s_lshl_b32 s59, s59, 1
        s_add_u32 s59, s59, s57
        v_lshrrev_b32 v2, 4, v1
        v_lshlrev_b32 v2, 3, v2
        v_lshlrev_b32 v239, 4, v1
        """)
        for r in range(4):
            A.e(f"s_add_u32 s33, s30, {8*r}")
            A.sdiv("s34", "s33", 9, "s35")
            A.e(f"""
            s_mul_i32 s35, s58, 192
            s_lshl_b32 s36, s34, 6
            s_add_u32 s36, s36, s35
            buffer_load_dwordx2 v[{240+4*r}:{241+4*r}], v2, s[24:27], s36 offen
            buffer_load_dwordx2 v[{242+4*r}:{243+4*r}], v2, s[24:27], s36 offen offset:32
            s_mul_i32 s35, s34, 9
            s_sub_u32 s35, s33, s35
            s_mul_i32 s36, s34, 18432
            s_lshl_b32 s37, s35, 10
            s_add_u32 s{60+r}, s36, s37
            s_mul_i32 s36, s58, 3
            s_add_u32 s36, s36, s34
            s_mul_i32 s36, s36, {4*9216}
            s_mul_i32 s37, s32, 2304
            s_add_u32 s36, s36, s37
            s_lshl_b32 s37, s35, 8
            s_add_u32 s{64+r}, s36, s37
            """)
    epi = A.newlab("g1epi"); cons = A.newlab("g1cons")
    A.e(f"s_cmp_lt_u32 s30, 4\ns_cbranch_scc1 {cons}")
    A.srd_off(12, 4, 5, WS_HT, SZ_X)
    A.srd(16, 6, 7, SZ_W1)
    CL = opt.get("g1_cl", 4); nseg = opt.get("g1_nseg", 4)
    A.e(f"""
    s_mul_i32 {LR['bP']}, s32, 2304
    s_mul_i32 s33, s57, {16*8*9216}
    s_add_u32 {LR['bP']}, {LR['bP']}, s33
    s_mul_i32 {LR['bW']}, s31, 384
    s_mul_i32 s33, s57, {16*64*9216}
    s_add_u32 {LR['bW']}, {LR['bW']}, s33
    """)
    if nseg > 1:
        A.e(f"s_lshr_b32 s33, s29, 2\ns_add_u32 s33, s33, s32\ns_and_b32 s33, s33, {nseg-1}\ns_mul_i32 {LR['K']}, s33, {CL//nseg}")
    else: A.e(f"s_mov_b32 {LR['K']}, 0"); CL = 0
    flP = opt.get("g1_flP", ""); flW = opt.get("g1_flW", "")
    A.e(f"""
    s_sub_u32 s33, s30, 4
    s_lshl_b32 s34, s33, 8
    v_add_u32 v7, s34, v1
    s_mul_i32 s50, s33, 6144
    s_add_u32 s50, s50, {H1_PB}
    s_add_u32 s54, s50, 4096
    s_lshl_b32 s51, s33, 12
    s_lshl_b32 s52, s33, 10
    s_add_u32 s52, s52, 16384
    s_cmp_lt_u32 s33, 2
    s_cselect_b32 s53, 1, 0
    s_mul_i32 s36, s33, {16*9216}
    s_mov_b32 s34, {(2**32+23)//24}
    s_mov_b32 s35, {(2**32+143)//144}
    """)
    for t in range(6):
        imm = (t*1024 if t < 4 else (t-4)*1024)
        A.e(f"""
        v_add_u32 v3, {t*64}, v1
        v_mul_hi_u32 v4, v3, s34
        v_mul_u32_u24 v5, 24, v4
        v_sub_u32 v5, v3, v5
        v_and_b32 v6, 2, v4
        v_xor_b32 v5, v5, v6
        v_bfe_u32 v6, v4, 3, 1
        v_lshlrev_b32 v6, 2, v6
        v_xor_b32 v5, v5, v6
        v_mul_u32_u24 v4, 9216, v4
        v_lshl_add_u32 v4, v5, 4, v4
        v_subrev_u32 v4, {imm}, v4
        v_add_u32 v{10+t}, s36, v4
        """)
    for t in range(4):
        A.e(f"""
        v_add_u32 v3, {t*64}, v7
        v_mul_hi_u32 v4, v3, s35
        v_mul_u32_u24 v4, 6912, v4
        v_lshl_add_u32 v{16+t}, v7, 4, v4
        """)
    A.e(f"""
    s_lshl_b32 s36, s33, 6
    s_add_u32 s36, s36, 1024
    v_add_u32 v3, s36, v1
    v_lshlrev_b32 v3, 4, v3
    v_add_u32 v20, {7*6912}, v3
    """)
    runs = [("s50", [(10+t, "s[16:19]", 'W', t*1024, flW) for t in range(4)]),
            ("s54", [(14+t, "s[16:19]", 'W', t*1024, flW) for t in range(2)]),
            ("s51", [(16+t, "s[12:15]", 'P', t*1024, flP) for t in range(4)])]
    loader(A, "g1", runs, 16, H1_NS, H1_ST, 1, 8*9216, 64*9216, CL, LR,
           opt_run=("s52", [(20, "s[12:15]", 'P', 0, flP)]), sBig="s53")
    pre_epi()
    if opt.get("pf_code3", True):
        A.e("v_subrev_u32 v3, 256, v0")
        code_prefetch(A, "gemm2_attn_kernel", "L_code_end", "v3", "v3", 52)
    pl = A.newlab("g1poll")
    A.e(f"""
    s_cmp_lg_u32 s30, 4
    s_cbranch_scc1 {epi}
    s_add_u32 s33, s59, 256
    s_lshl_b32 s33, s33, 7
    v_lshlrev_b32 v5, 2, v1
    v_add_u32 v5, s33, v5
    s_mov_b64 exec, 3
    s_mov_b32 s78, 0
    {pl}:
    buffer_load_dword v4, v5, s[72:75], 0 offen sc1
    s_add_u32 s78, s78, 1
    s_waitcnt vmcnt(0)
    v_cmp_ne_u32 vcc, 0, v4
    s_cmp_gt_u32 s78, 400000
    s_cbranch_scc1 {pl}_x
    s_cmp_eq_u32 vcc_lo, 3
    s_cbranch_scc1 {pl}_x
    s_sleep 1
    s_branch {pl}
    {pl}_x:
    s_mov_b64 exec, -1
    s_branch {epi}
    """)
    A.lab(cons)
    pre_epi()
    A.e(f"""
    v_and_b32 v2, 15, v1
    v_lshrrev_b32 v3, 4, v1
    v_mul_u32_u24 v4, 2304, v3
    v_lshl_add_u32 v6, v2, 4, v4
    v_lshrrev_b32 v5, 2, v2
    v_lshl_add_u32 v4, v3, 3, v5
    v_mul_u32_u24 v4, 384, v4
    v_and_b32 v5, 3, v2
    v_lshl_add_u32 v4, v5, 3, v4
    v_add_u32 v4, {H1_PB}, v4
    v_lshrrev_b32 v5, 3, v2
    v_and_b32 v3, 1, v3
    v_lshl_add_u32 v5, v3, 1, v5
    s_mul_i32 s33, s30, 3
    v_xor_b32 v3, s33, v5
    v_lshl_add_u32 v7, v3, 5, v4
    s_add_u32 s33, s33, 1
    v_xor_b32 v3, s33, v5
    v_lshl_add_u32 v8, v3, 5, v4
    s_add_u32 s33, s33, 1
    v_xor_b32 v3, s33, v5
    v_lshl_add_u32 v9, v3, 5, v4
    s_and_b32 s33, s30, 1
    s_mul_i32 s76, s33, 27648
    s_xor_b32 s77, s59, 1
    s_mul_i32 s34, s77, 55296
    s_add_u32 s34, s34, s76
    s_mov_b32 s79, s34
    v_add_u32 v10, s76, v239
    """)
    ACC = 16; FB = 128; NF = 48
    def frags_of(kc):
        fr = []
        for mt in range(3):
            fr.append((mt*4, [(2, 0, f"ds_read_b64_tr_b16 {{dst}}, v{13+mt} offset:{kc*12288}"),
                              (2, 2, f"ds_read_b64_tr_b16 {{dst}}, v{13+mt} offset:{kc*12288+1536}")]))
        for nt in range(9):
            fr.append((12+nt*4, [(4, 0, f"ds_read_b128 {{dst}}, v12 offset:{kc*9216+nt*256}")]))
        return fr
    mf = [(ACC + (mt*9+nt)*4, mt*4, 12+nt*4) for mt in range(3) for nt in range(9)]
    ms = consumer_sub2(A, "g1", 16, H1_NS, H1_ST, [(12,6),(13,7),(14,8),(15,9)], frags_of, NF, FB, mf, "s44", "s47")
    accs = [m[0] for m in mf]
    own = A.newlab("g1own")
    A.e(f"s_lshr_b32 s33, s30, 1\ns_cmp_eq_u32 s33, s57\ns_cbranch_scc1 {own}")
    def snd(acc):
        t = (acc-ACC)//4
        pre = f"s_add_u32 s79, s79, 4096\n" if (t % 4 == 0 and t) else ""
        return pre + f"buffer_store_dwordx4 {vr(acc,4)}, v239, s[68:71], s79 offen offset:{(t%4)*1024} sc1"
    drain(A, ms, accs, snd)
    A.stamp(2)
    A.e(f"""
    s_add_u32 s77, s77, 256
    s_lshl_b32 s77, s77, 7
    s_and_b32 s33, s30, 1
    s_lshl_b32 s33, s33, 2
    s_add_u32 s77, s77, s33
    v_mov_b32 v3, s77
    v_mov_b32 v4, 1
    s_waitcnt vmcnt(0)
    s_mov_b64 exec, 1
    buffer_store_dword v4, v3, s[72:75], 0 offen sc1
    s_mov_b64 exec, -1
    s_branch {epi}
    """)
    A.lab(own)
    drain(A, ms, accs, lambda acc: f"ds_write_b128 v10, {vr(acc,4)} offset:{(acc-ACC)//4*1024}")
    A.stamp(2)
    A.e("s_waitcnt lgkmcnt(0)")
    A.lab(epi)
    k1 = -2.0*math.sqrt(2.0/math.pi)*math.log2(math.e); k2 = k1*0.044715
    st = opt.get("u_st", "")
    A.e(f"""
    v_and_b32 v2, 15, v1
    v_lshrrev_b32 v3, 4, v1
    v_mul_u32_u24 v4, 9216, v3
    v_lshl_add_u32 v4, v2, 4, v4
    s_mov_b32 s50, {hex(f2u(k2))}
    v_mov_b32 v8, {hex(f2u(k1))}
    s_mul_i32 s51, s59, 55296
    s_add_u32 s52, s51, 9216
    s_barrier
    """)
    if opt.get("epi_stamps"): A.stamp(1)
    l3 = A.newlab("g1e3")
    def rd(r):
        b = 16 + 16*r
        A.e(f"""
        v_add_u32 v6, s{60+r}, v239
        buffer_load_dwordx4 v[{b+8}:{b+11}], v6, s[68:71], s51 offen sc1
        buffer_load_dwordx4 v[{b+12}:{b+15}], v6, s[68:71], s52 offen sc1
        ds_read_b128 v[{b}:{b+3}], v6
        ds_read_b128 v[{b+4}:{b+7}], v6 offset:9216
        """)
    def fin(r, vw):
        b = 16 + 16*r; bb = 240 + 4*r; T = 96
        for i in range(4):
            A.e(f"v_lshlrev_b32 v{T+2*i}, 16, v{bb+i}\nv_and_b32 v{T+1+2*i}, 0xffff0000, v{bb+i}")
        if r == 0: A.e("s_waitcnt lgkmcnt(0)")
        for i in range(4): A.e(f"v_pk_add_f32 v[{b+2*i}:{b+2*i+1}], v[{b+2*i}:{b+2*i+1}], v[{T+2*i}:{T+1+2*i}]")
        A.e(f"s_waitcnt vmcnt({vw})")
        for i in range(4): A.e(f"v_pk_add_f32 v[{b+2*i}:{b+2*i+1}], v[{b+2*i}:{b+2*i+1}], v[{b+8+2*i}:{b+9+2*i}]")
        gelu8(A, b, b+8, 8, "s50")
        o = 104 + 4*r
        for i in range(4): A.e(f"v_cvt_pk_bf16_f32 v{o+i}, v{b+2*i}, v{b+1+2*i}")
        A.e(f"buffer_store_dwordx4 v[{o}:{o+3}], v4, s[20:23], s{64+r} offen{st}")
    for r in range(3): rd(r)
    A.e(f"s_cmp_ge_u32 s30, 3\ns_cbranch_scc1 {l3}")
    rd(3)
    fin(0, 6); fin(1, 5); fin(2, 4); fin(3, 3)
    A.e(f"s_branch {done}")
    A.lab(l3)
    fin(0, 4); fin(1, 3); fin(2, 2)
    A.e(f"s_branch {done}")

def gen_k2(A, name, opt):
    from k2b import qkv, QK_LDS
    kernel_head(A, name)
    done = A.newlab("k2done"); lq = A.newlab("k2qkv")
    A.e(f"""
    s_cmp_ge_u32 s2, 256
    s_cbranch_scc1 {done}_x
    """)
    A.stamp_init()
    A.e(f"""
    s_load_dwordx2 s[4:5], s[0:1], {KA_WS}
    s_load_dwordx4 s[6:9], s[0:1], {KA_W1}
    s_load_dwordx2 s[10:11], s[0:1], {KA_WQKV}
    s_and_b32 s28, s2, 7
    s_lshr_b32 s29, s2, 3
    v_lshrrev_b32 v2, 6, v0
    v_and_b32 v1, 63, v0
    v_readfirstlane_b32 s30, v2
    s_waitcnt lgkmcnt(0)
    s_cmp_ge_u32 s29, 24
    s_cbranch_scc1 {lq}
    """.replace("s_load_dwordx4 s[6:9], s[0:1], %d" % KA_W1, "s_load_dwordx2 s[6:7], s[0:1], %d\ns_load_dwordx2 s[8:9], s[0:1], %d" % (KA_W1, KA_B1)))
    (gemm1_split if opt.get('g1_split', 1) else gemm1)(A, opt, done)
    A.lab(lq)
    qkv(A, opt, done)
    A.lab(done)
    A.stamp_out(1)
    A.lab(done + "_x")
    A.e("s_endpgm")
    kernel_desc(A, name, 256, 102)
    return f"; @launch kernel={name} grid=(256,1,1) block=(512,1,1) lds={max(G1_NS*G1_ST, QK_LDS, H1_NS*H1_ST)}"
```

```python
from asm import *
from layout import *
from core import *
from k1 import f2u
import math
QK_PB = 8192; QK_WB = 27648; QK_ST = QK_PB + QK_WB; QK_NS = 4; QK_LDS = QK_NS*QK_ST
LOG2E = math.log2(math.e)

def phi_pack(A, src, dst, t, opt):
    n = 8
    if opt.get("round_q", False):
        for i in range(0, n, 2): A.e(f"v_cvt_pk_bf16_f32 v{t+i}, v{src+i}, v{src+i+1}")
        for i in range(0, n, 2): A.e(f"v_lshlrev_b32 v{src+i}, 16, v{t+i}\nv_and_b32 v{src+i+1}, 0xffff0000, v{t+i}")
    for i in range(0, n, 2): A.e(f"v_pk_mul_f32 v[{t+i}:{t+i+1}], v[{src+i}:{src+i+1}], s[50:51]")
    for i in range(n): A.e(f"v_exp_f32_e64 v{t+i}, v{t+i} clamp")
    for i in range(n): A.e(f"v_max_f32 v{src+i}, s56, v{src+i}")
    for i in range(0, n, 2): A.e(f"v_pk_add_f32 v[{src+i}:{src+i+1}], v[{src+i}:{src+i+1}], v[{t+i}:{t+i+1}]")
    for i in range(0, n, 2): A.e(f"v_cvt_pk_bf16_f32 v{dst[i//2]}, v{src+i}, v{src+i+1}")

def qkv(A, opt, done):
    A.e(f"""
    s_lshr_b32 s31, s28, 1
    s_and_b32 s32, s28, 1
    s_lshl_b32 s32, s32, 3
    s_add_u32 s32, s32, s29
    s_sub_u32 s32, s32, 24
    s_mov_b32 s50, {hex(f2u(LOG2E))}
    s_mov_b32 s51, {hex(f2u(LOG2E))}
    s_mov_b32 s56, {hex(f2u(1e-6))}
    s_and_b32 s33, s30, 3
    """)
    A.srd_off(12, 4, 5, WS_XN, SZ_X)
    A.srd(16, 10, 11, SZ_WQKV)
    A.srd_off(20, 4, 5, WS_PQ, SZ_X)
    A.srd_off(24, 4, 5, WS_KV, SZ_KV)
    A.e(f"""
    v_and_b32 v2, 15, v1
    v_lshrrev_b32 v3, 4, v1
    v_lshrrev_b32 v4, 2, v2
    v_lshlrev_b32 v5, 11, v3
    v_lshl_add_u32 v10, v2, 4, v5
    s_lshl_b32 s34, s33, 9
    v_add_u32 v10, s34, v10
    v_lshl_add_u32 v4, v3, 2, v4
    v_mul_u32_u24 v4, 288, v4
    v_and_b32 v5, 3, v2
    v_lshl_add_u32 v4, v5, 3, v4
    v_add_u32 v11, {QK_PB}, v4
    """)
    lq = A.newlab("qw"); gather = A.newlab("qgather")
    A.e(f"s_cmp_ge_u32 s30, 4\ns_cbranch_scc1 {lq}")
    stat = [(mt*4, [(4, 0, f"ds_read_b128 {{dst}}, v13 offset:{mt*256}")]) for mt in range(2)]
    def wfrag(sg, t):
        return [(2, 0, f"ds_read_b64_tr_b16 {{dst}}, v14 offset:{sg*9216+t*32}"),
                (2, 2, f"ds_read_b64_tr_b16 {{dst}}, v14 offset:{sg*9216+t*32+4608}")]
    M = "v_mfma_f32_16x16x32_bf16"
    if opt.get("kv_prio"): A.e(f"s_setprio {opt['kv_prio']}")
    ACC = 16; SB = 160; RB = 176
    def mf_kv(j, sb, rb, first):
        return [f"{M} {vr(ACC+(j*2+mt)*4,4)}, {vr(sb+mt*4,4)}, {vr(rb,4)}, {'0' if first else vr(ACC+(j*2+mt)*4,4)}" for mt in range(2)]
    consumer_ring(A, "kv", 18, QK_NS, QK_ST, [(13,10),(14,11)], stat, 8, SB, [wfrag(1,t) for t in range(9)] + [wfrag(2,t) for t in range(9)],
                  9, RB, opt.get("kv_look", 5), mf_kv, "s44", "s47")
    A.e("s_nop 7")
    PK = 160; VV = 196
    for t in range(9):
        phi_pack(A, ACC + t*8, [PK+t*4+i for i in range(4)], 232, opt)
    for t in range(9):
        for i in range(4):
            a = ACC + (9+t)*8 + 2*i
            A.e(f"v_cvt_pk_bf16_f32 v{VV+t*4+i}, v{a}, v{a+1}")
    for i in range(4): A.e(f"v_mov_b32 v{232+i}, 0x3f803f80")
    A.e("s_nop 1")
    pairs = []
    for tk in range(9):
        for tv in (tk-1, tk, tk+1):
            if 0 <= tv < 9: pairs.append((2*tk+tv, tk, tv))
    for p, tk, tv in pairs:
        A.e(f"{M} {vr(ACC+p*4,4)}, {vr(PK+tk*4,4)}, {vr(VV+tv*4,4)}, 0")
    for tk in range(9):
        A.e(f"{M} {vr(ACC+(25+tk)*4,4)}, {vr(PK+tk*4,4)}, v[232:235], 0")
    A.e(f"""
    s_mul_i32 s34, s33, {34*1024}
    v_lshlrev_b32 v2, 4, v1
    v_add_u32 v2, s34, v2
    s_barrier
    s_nop 7
    """)
    for p in range(34): A.e(f"ds_write_b128 v2, {vr(ACC+p*4,4)} offset:{p*1024}")
    A.e(f"s_waitcnt lgkmcnt(0)\ns_branch {gather}")
    A.lab(lq)
    A.e(f"s_setprio {opt.get('q_prio', 1)}")
    A.e(f"""
    v_lshlrev_b32 v20, 4, v1
    s_lshl_b32 s34, s33, 15
    v_add_u32 v20, s34, v20
    s_mul_i32 s52, s33, 7
    """)
    for t in range(7):
        A.e(f"s_add_u32 s35, s52, {t}\ns_min_u32 s35, s35, 26")
        A.sdiv("s36", "s35", 9, "s37")
        A.e(f"""
        s_mul_i32 s37, s36, 9
        s_sub_u32 s37, s35, s37
        s_lshl_b32 s37, s37, 6
        v_add_u32 v3, s37, v1
        """)
        A.vdiv("v4", "v3", 18, "s37")
        A.e(f"""
        v_mul_u32_u24 v5, 18, v4
        v_sub_u32 v5, v3, v5
        v_mul_u32_u24 v4, 3456, v4
        v_lshl_add_u32 v4, v5, 4, v4
        s_mul_i32 s36, s36, 1152
        v_add_u32 v{21+t}, s36, v4
        """)
    A.e(f"""
    s_lshl_b32 s53, s33, 11
    s_lshl_b32 s54, s52, 10
    s_add_u32 s54, s54, {QK_PB}
    s_lshl_b32 s55, s35, 10
    s_add_u32 s55, s55, {QK_PB}
    s_lshl_b32 s45, s32, 11
    s_mul_i32 s46, s31, 288
    s_mov_b32 s40, 0
    s_mov_b32 s41, 0
    """)
    if opt.get("qk_nodma"): A.e("s_mov_b32 s45, 0x7ff00000\ns_mov_b32 s46, 0x7ff00000\ns_mov_b32 s40, 100")
    flP = opt.get("qk_flP", ""); flW = opt.get("qk_flW", "")
    def dma_groups():
        g = []
        g.append(f"s_add_u32 m0, s41, s53\ns_add_u32 s42, s41, s54\nbuffer_load_dwordx4 v20, s[12:15], s45 offen{flP} lds")
        g.append(f"buffer_load_dwordx4 v20, s[12:15], s45 offen offset:1024{flP} lds")
        for t in range(6):
            g.append(f"s_add_u32 m0, s42, {t*1024}\ns_nop 0\nbuffer_load_dwordx4 v{21+t}, s[16:19], s46 offen{flW} lds")
        g.append(f"""s_add_u32 m0, s41, s55
        s_add_u32 s40, s40, 1
        buffer_load_dwordx4 v27, s[16:19], s46 offen{flW} lds
        s_add_u32 s41, s41, {QK_ST}
        s_cmp_eq_u32 s41, {QK_NS*QK_ST}
        s_cselect_b32 s41, 0, s41
        s_add_u32 s45, s45, 131072
        s_add_u32 s46, s46, {32*3456}
        s_cmp_ge_u32 s40, 18
        s_cselect_b32 s45, 0x7ff00000, s45
        s_cselect_b32 s46, 0x7ff00000, s46""")
        return g
    for j in range(3):
        for x in dma_groups(): A.e(x)
    QACC = 32; QSB = 104; QRB = 120
    def mf_q(j, sb, rb, first):
        return [f"{M} {vr(QACC+(j*2+nt)*4,4)}, {vr(rb,4)}, {vr(sb+nt*4,4)}, {'0' if first else vr(QACC+(j*2+nt)*4,4)}" for nt in range(2)]
    consumer_ring(A, "q", 18, QK_NS, QK_ST, [(13,10),(14,11)], stat, 8, QSB, [wfrag(0,t) for t in range(9)],
                  9, QRB, opt.get("q_look", 5), mf_q, "s44", "s47", pre_bar="s_waitcnt vmcnt(9)", post_bar=dma_groups, pre_bar0="s_waitcnt vmcnt(18)")
    A.e(f"""
    s_waitcnt vmcnt(0)
    s_barrier
    v_and_b32 v2, 15, v1
    v_lshrrev_b32 v3, 4, v1
    v_mul_u32_u24 v2, 1152, v2
    v_lshl_add_u32 v2, v3, 3, v2
    v_add_u32 v3, {16*1152}, v2
    s_lshl_b32 s34, s32, 7
    s_lshl_b32 s35, s33, 5
    s_add_u32 s34, s34, s35
    s_mul_i32 s34, s34, 1152
    s_mul_i32 s35, s31, 288
    s_add_u32 s34, s34, s35
    """)
    for t in range(9):
        d = 160 + t*4
        phi_pack(A, QACC + t*8, [d+i for i in range(4)], 232, opt)
        A.e(f"buffer_store_dwordx2 v[{d}:{d+1}], v2, s[20:23], s34 offen offset:{t*32}")
        A.e(f"buffer_store_dwordx2 v[{d+2}:{d+3}], v3, s[20:23], s34 offen offset:{t*32}")
    A.lab(gather)
    A.e("s_barrier")
    A.e(f"s_mul_i32 s34, s31, 12800\nv_mov_b32 v30, {OOB}")
    for r in range(6):
        A.e(f"v_add_u32 v2, {512*r}, v0")
        A.vdiv("v3", "v2", 342, "s35")
        A.e(f"v_mul_u32_u24 v4, 342, v3\nv_sub_u32 v4, v2, v4")
        A.vdiv("v5", "v4", 18, "s35")
        A.e(f"""
        v_mul_u32_u24 v6, 18, v5
        v_sub_u32 v6, v4, v6
        v_mul_u32_u24 v7, 18, v3
        v_add_u32 v8, v7, v6
        v_add_u32 v9, v7, v5
        v_lshrrev_b32 v15, 4, v8
        v_lshrrev_b32 v16, 4, v9
        v_lshl_add_u32 v16, v15, 1, v16
        v_add_u32 v15, 25, v15
        v_and_b32 v9, 15, v9
        v_cmp_eq_u32 vcc, 18, v5
        v_bfe_u32 v17, v8, 2, 2
        v_and_b32 v18, 3, v8
        v_cndmask_b32 v16, v16, v15, vcc
        v_cndmask_b32 v9, v9, 0, vcc
        v_lshlrev_b32 v16, 10, v16
        v_lshl_add_u32 v16, v17, 8, v16
        v_lshl_add_u32 v16, v9, 4, v16
        v_lshl_add_u32 v16, v18, 2, v16
        v_min_u32 v16, {34*1024-4}, v16
        v_add_u32 v17, {2*34*1024}, v16
        ds_read_b32 v20, v16
        ds_read_b32 v21, v16 offset:{34*1024}
        ds_read_b32 v22, v17
        ds_read_b32 v23, v17 offset:{34*1024}
        v_mul_u32_u24 v24, 1600, v3
        v_mul_u32_u24 v25, 80, v5
        v_cmp_gt_u32 vcc, 2736, v2
        v_add_u32 v24, v24, v25
        v_lshl_add_u32 v24, v6, 2, v24
        v_cndmask_b32 v24, v30, v24, vcc
        s_waitcnt lgkmcnt(0)
        v_add_f32 v20, v20, v21
        v_add_f32 v22, v22, v23
        v_add_f32 v{32+r}, v20, v22
        buffer_atomic_add_f32 v{32+r}, v24, s[24:27], s34 offen
        """.replace("v_cndmask_b32 v9, v9, 0, vcc", "v_cndmask_b32_e64 v9, v9, 0, vcc"))
    A.e(f"s_branch {done}")
```

```python
from asm import *
from layout import *
from core import *
from k1 import f2u
from k2 import LR
M16 = "v_mfma_f32_16x16x32_bf16"
G2_PB = 24576; G2_WB = 128*128; G2_ST = G2_PB + G2_WB; G2_NS = 4
OSTR = 1168; OT = 64*OSTR; AT_ST = 32*576; AT_NS = 4; KVB = 163840 - SZ_KV; AT_EP = OT + 2*AT_ST; ESTR = 592
SZ_EX = 192*24576
S2_PB = 12288; S2_WB = 64*256; S2_ST = S2_PB + S2_WB; S2_NS = 5

def poll_flag(A, sidx, wave):
    pl = A.newlab("poll"); pd = A.newlab("pd")
    A.e(f"""
    s_cmp_lg_u32 s30, {wave}
    s_cbranch_scc1 {pd}
    s_lshl_b32 s78, {sidx}, 7
    v_mov_b32 v3, s78
    s_mov_b32 s78, 0
    {pl}:
    buffer_load_dword v4, v3, s[64:67], 0 offen sc1
    s_add_u32 s78, s78, 1
    s_waitcnt vmcnt(0)
    v_readfirstlane_b32 s79, v4
    s_cmp_gt_u32 s78, 400000
    s_cbranch_scc1 {pd}
    s_cmp_lg_u32 s79, 0
    s_cbranch_scc1 {pd}
    s_sleep 1
    s_branch {pl}
    {pd}:
    """)

def gemm2(A, opt, done):
    A.e("s_sub_u32 s33, s29, 8")
    A.sdiv("s56", "s33", 6, "s34")
    A.e(f"""
    s_mul_i32 s34, s56, 6
    s_sub_u32 s32, s33, s34
    s_lshl_b32 s34, s28, 2
    s_add_u32 s31, s56, s34
    """)
    epi = A.newlab("g2epi"); cons = A.newlab("g2cons")
    def pre_epi():
        A.srd(20, 52, 53, SZ_X)
        A.srd_off(24, 4, 5, WS_AP, SZ_X)
        A.srd(60, 8, 9, SZ_B2)
        A.srd_off(64, 4, 5, WS_FL, SZ_FL)
        A.e(f"""
        s_mul_i32 s34, s31, {64*1152}
        s_mul_i32 s35, s32, 192
        s_add_u32 s74, s34, s35
        s_lshl_b32 s76, s31, 1
        s_cmp_ge_u32 s32, 3
        s_cselect_b32 s37, 576, 0
        s_addc_u32 s76, s76, 0
        s_sub_u32 s37, s35, s37
        s_mul_i32 s35, s76, 36864
        s_add_u32 s75, s37, s35
        s_lshl_b32 s35, s31, 7
        s_mov_b32 s36, {(2**32+11)//12}
        """)
        for r in range(2):
            b = 240 + 4*r
            A.e(f"""
            v_add_u32 v2, {512*r}, v0
            v_mul_hi_u32 v3, v2, s36
            v_mul_u32_u24 v4, 12, v3
            v_sub_u32 v4, v2, v4
            v_mul_u32_u24 v5, 1152, v3
            v_lshl_add_u32 v{b+1}, v4, 4, v5
            v_mul_u32_u24 v5, 576, v3
            v_lshl_add_u32 v{b+2}, v4, 4, v5
            v_lshlrev_b32 v5, 1, v3
            buffer_load_ushort v{b+3}, v5, s[60:63], s35 offen
            v_lshrrev_b32 v7, 1, v4
            v_lshlrev_b32 v7, 12, v7
            v_lshrrev_b32 v8, 4, v3
            v_lshl_add_u32 v7, v8, 10, v7
            v_and_b32 v8, 1, v4
            v_lshl_add_u32 v7, v8, 9, v7
            v_and_b32 v8, 15, v3
            v_lshl_add_u32 v{b}, v8, 4, v7
            """)
    A.e(f"s_cmp_lt_u32 s30, 4\ns_cbranch_scc1 {cons}")
    A.srd_off(12, 4, 5, WS_U, SZ_U)
    A.srd(16, 6, 7, SZ_W2)
    CL = opt.get("g2_cl", 6); nseg = opt.get("g2_nseg", 6)
    A.e(f"s_mul_i32 {LR['bP']}, s32, 1536\ns_lshl_b32 {LR['bW']}, s31, 7")
    if nseg > 1:
        A.e(f"s_add_u32 s33, s56, s32")
        A.sdiv("s34", "s33", nseg, "s35")
        A.e(f"s_mul_i32 s34, s34, {nseg}\ns_sub_u32 s33, s33, s34\ns_mul_i32 {LR['K']}, s33, {CL//nseg}")
    else: A.e(f"s_mov_b32 {LR['K']}, 0"); CL = 0
    flP = opt.get("g2_flP", ""); flW = opt.get("g2_flW", "")
    A.e(f"""
    s_sub_u32 s33, s30, 4
    v_lshrrev_b32 v3, 3, v1
    v_and_b32 v4, 7, v1
    v_bfe_u32 v5, v1, 4, 2
    v_lshlrev_b32 v5, 1, v5
    v_xor_b32 v4, v4, v5
    v_lshlrev_b32 v3, 12, v3
    v_lshl_add_u32 v3, v4, 4, v3
    s_lshl_b32 s35, s33, 17
    v_add_u32 v10, s35, v3
    v_add_u32 v11, {32768-1024}, v10
    v_add_u32 v12, {2*32768-2048}, v10
    v_add_u32 v13, {3*32768-3072}, v10
    s_mul_i32 s34, s33, 384
    v_add_u32 v7, s34, v1
    v_add_u32 v8, 256, v7
    s_lshl_b32 s50, s33, 12
    s_add_u32 s50, s50, {G2_PB}
    s_mul_i32 s51, s33, 6144
    s_add_u32 s57, s51, 4096
    s_mov_b32 s35, {(2**32+95)//96}
    """)
    for t in range(6):
        A.e(f"""
        v_add_u32 v3, {t*64}, v7
        v_mul_hi_u32 v4, v3, s35
        v_mul_u32_u24 v4, 7680, v4
        v_lshl_add_u32 v{14+t}, v{7 if t < 4 else 8}, 4, v4
        """)
    runs = [("s50", [(10+t, "s[16:19]", 'W', t*1024, flW) for t in range(4)]),
            ("s51", [(14+t, "s[12:15]", 'P', t*1024, flP) for t in range(4)]),
            ("s57", [(18+t, "s[12:15]", 'P', t*1024, flP) for t in range(2)])]
    loader(A, "g2", runs, 36, G2_NS, G2_ST, 1, 16*9216, 128*4096, CL, LR)
    pre_epi()
    poll_flag(A, "s76", 4)
    A.e(f"s_branch {epi}")
    A.lab(cons)
    pre_epi()
    A.e(f"""
    v_and_b32 v2, 15, v1
    v_lshrrev_b32 v3, 4, v1
    s_lshl_b32 s35, s30, 2
    v_add_u32 v4, s35, v3
    v_mul_u32_u24 v4, 1536, v4
    v_lshl_add_u32 v6, v2, 4, v4
    v_lshrrev_b32 v5, 2, v2
    v_lshl_add_u32 v4, v3, 2, v5
    v_bfe_u32 v5, v4, 1, 2
    v_lshlrev_b32 v4, 7, v4
    v_lshl_add_u32 v4, v5, 5, v4
    v_and_b32 v5, 3, v2
    v_lshl_add_u32 v4, v5, 3, v4
    s_lshl_b32 s35, s30, 12
    s_add_u32 s35, s35, {G2_PB}
    v_add_u32 v7, s35, v4
    v_xor_b32 v8, 32, v7
    v_xor_b32 v9, 64, v7
    v_xor_b32 v10, 96, v7
    s_mul_i32 s35, s30, 24576
    v_lshlrev_b32 v2, 4, v1
    v_add_u32 v2, s35, v2
    """)
    ACC = 16; FB = 112; NF = 40
    frags = []
    for nt in range(4):
        frags.append((24+nt*4, [(2, 0, f"ds_read_b64_tr_b16 {{dst}}, v{12+nt}"),
                                (2, 2, f"ds_read_b64_tr_b16 {{dst}}, v{12+nt} offset:2048")]))
    for mt in range(6):
        frags.append((mt*4, [(4, 0, f"ds_read_b128 {{dst}}, v11 offset:{mt*256}")]))
    mf = [(ACC + (mt*4+nt)*4, mt*4, 24+nt*4) for mt in range(6) for nt in range(4)]
    consumer_full(A, "g2", 36, G2_NS, G2_ST, [(11,6),(12,7),(13,8),(14,9),(15,10)], frags, NF, FB, mf, "s44", "s47",
                  dump=lambda acc: f"ds_write_b128 v2, {vr(acc,4)} offset:{(acc-ACC)//4*1024}")
    A.e("s_waitcnt lgkmcnt(0)")
    A.lab(epi)
    A.e("s_barrier")
    def loads(r):
        b = 240 + 4*r; e = 16 + 40*r
        A.e(f"""
        buffer_load_dwordx4 v[{e+32}:{e+35}], v{b+2}, s[24:27], s75 offen sc1
        v_add_u32 v8, 49152, v{b}
        ds_read_b128 v[{e}:{e+3}], v{b}
        ds_read_b128 v[{e+4}:{e+7}], v{b} offset:256
        ds_read_b128 v[{e+8}:{e+11}], v{b} offset:24576
        ds_read_b128 v[{e+12}:{e+15}], v{b} offset:24832
        ds_read_b128 v[{e+16}:{e+19}], v8
        ds_read_b128 v[{e+20}:{e+23}], v8 offset:256
        ds_read_b128 v[{e+24}:{e+27}], v8 offset:24576
        ds_read_b128 v[{e+28}:{e+31}], v8 offset:24832
        """)
    def pk(d, a):
        for i in range(4): A.e(f"v_pk_add_f32 v[{d+2*i}:{d+2*i+1}], v[{d+2*i}:{d+2*i+1}], v[{a+2*i}:{a+2*i+1}]")
    def final(r, lw, vw):
        b = 240 + 4*r; e = 16 + 40*r
        A.e(f"s_waitcnt lgkmcnt({lw})")
        pk(e, e+8); pk(e+16, e+24); pk(e, e+16)
        A.e(f"s_waitcnt vmcnt({vw})")
        A.e(f"v_lshlrev_b32 v{e+8}, 16, v{b+3}\nv_lshlrev_b32 v{e+9}, 16, v{b+3}")
        for i in range(4): A.e(f"v_pk_add_f32 v[{e+2*i}:{e+2*i+1}], v[{e+2*i}:{e+2*i+1}], v[{e+8}:{e+9}]")
        for i in range(4):
            A.e(f"v_lshlrev_b32 v{e+16+2*i}, 16, v{e+32+i}\nv_and_b32 v{e+17+2*i}, 0xffff0000, v{e+32+i}")
        pk(e, e+16)
        o = e + 36
        for i in range(4): A.e(f"v_cvt_pk_bf16_f32 v{o+i}, v{e+2*i}, v{e+1+2*i}")
        A.e(f"buffer_store_dwordx4 v[{o}:{o+3}], v{b+1}, s[20:23], s74 offen")
    hi2 = A.newlab("g2hi2")
    loads(0)
    A.e(f"s_cmp_ge_u32 s30, 4\ns_cbranch_scc1 {hi2}")
    A.e("s_waitcnt lgkmcnt(4)")
    loads(1); final(0, 8, 1); final(1, 0, 1)
    A.e(f"s_branch {done}")
    A.lab(hi2)
    final(0, 0, 0)
    A.e(f"s_branch {done}")

def gemm2_split(A, opt, done):
    A.e("s_sub_u32 s33, s29, 8")
    A.sdiv("s56", "s33", 6, "s34")
    A.e(f"""
    s_mul_i32 s34, s56, 6
    s_sub_u32 s32, s33, s34
    s_lshr_b32 s34, s28, 1
    s_lshl_b32 s34, s34, 2
    s_add_u32 s31, s56, s34
    s_and_b32 s57, s28, 1
    """)
    epi = A.newlab("g2epi"); cons = A.newlab("g2cons")
    def srds():
        A.srd(20, 52, 53, SZ_X)
        A.srd_off(24, 4, 5, WS_AP, SZ_X)
        A.srd(60, 8, 9, SZ_B2)
        A.srd_off(64, 4, 5, WS_FL, SZ_FL)
        A.srd_off(68, 4, 5, WS_EX, SZ_EX)
    A.e(f"s_cmp_lt_u32 s30, 4\ns_cbranch_scc1 {cons}")
    A.srd_off(12, 4, 5, WS_U, SZ_U)
    A.srd(16, 6, 7, SZ_W2)
    CL = opt.get("g2_cl", 6); nseg = opt.get("g2_nseg", 6)
    A.e(f"""
    s_mul_i32 {LR['bP']}, s32, 1536
    s_mul_i32 s33, s57, {36*8*9216}
    s_add_u32 {LR['bP']}, {LR['bP']}, s33
    s_lshl_b32 {LR['bW']}, s31, 8
    s_mul_i32 s33, s57, {36*64*4096}
    s_add_u32 {LR['bW']}, {LR['bW']}, s33
    """)
    if nseg > 1:
        A.e(f"s_add_u32 s33, s56, s32")
        A.sdiv("s34", "s33", nseg, "s35")
        A.e(f"s_mul_i32 s34, s34, {nseg}\ns_sub_u32 s33, s33, s34\ns_mul_i32 {LR['K']}, s33, {CL//nseg}")
    else: A.e(f"s_mov_b32 {LR['K']}, 0"); CL = 0
    flP = opt.get("g2_flP", ""); flW = opt.get("g2_flW", "")
    A.e(f"""
    s_sub_u32 s33, s30, 4
    v_lshrrev_b32 v3, 4, v1
    v_and_b32 v4, 15, v1
    v_lshlrev_b32 v5, 1, v3
    v_xor_b32 v4, v4, v5
    v_lshlrev_b32 v3, 12, v3
    v_lshl_add_u32 v3, v4, 4, v3
    s_lshl_b32 s35, s33, 16
    v_add_u32 v10, s35, v3
    v_xor_b32 v11, 128, v10
    v_add_u32 v11, {16384-1024}, v11
    v_add_u32 v12, {32768-2048}, v10
    v_add_u32 v13, {32768-2048}, v11
    s_mul_i32 s34, s33, 192
    v_add_u32 v7, s34, v1
    s_lshl_b32 s50, s33, 12
    s_add_u32 s50, s50, {S2_PB}
    s_mul_i32 s51, s33, 3072
    s_mov_b32 s35, {(2**32+95)//96}
    """)
    for t in range(3):
        A.e(f"""
        v_add_u32 v3, {t*64}, v7
        v_mul_hi_u32 v4, v3, s35
        v_mul_u32_u24 v4, 7680, v4
        v_lshl_add_u32 v{14+t}, v7, 4, v4
        """)
    runs = [("s50", [(10+t, "s[16:19]", 'W', t*1024, flW) for t in range(4)]),
            ("s51", [(14+t, "s[12:15]", 'P', t*1024, flP) for t in range(3)])]
    loader(A, "g2", runs, 36, S2_NS, S2_ST, 1, 8*9216, 64*4096, CL, LR)
    srds()
    A.e(f"s_branch {epi}")
    A.lab(cons)
    srds()
    A.e(f"""
    s_and_b32 s33, s30, 1
    s_lshr_b32 s34, s30, 1
    v_and_b32 v2, 15, v1
    v_lshrrev_b32 v3, 4, v1
    s_lshl_b32 s35, s33, 2
    v_add_u32 v4, s35, v3
    v_mul_u32_u24 v4, 1536, v4
    v_lshl_add_u32 v6, v2, 4, v4
    v_lshrrev_b32 v5, 2, v2
    v_lshl_add_u32 v4, v3, 2, v5
    v_and_b32 v5, 7, v4
    s_lshl_b32 s35, s34, 2
    v_xor_b32 v5, s35, v5
    v_lshlrev_b32 v4, 8, v4
    v_lshl_add_u32 v4, v5, 5, v4
    v_and_b32 v5, 3, v2
    v_lshl_add_u32 v4, v5, 3, v4
    s_lshl_b32 s35, s33, 13
    s_add_u32 s35, s35, {S2_PB}
    v_add_u32 v7, s35, v4
    v_xor_b32 v8, 32, v7
    v_xor_b32 v9, 64, v7
    v_xor_b32 v10, 96, v7
    s_mul_i32 s35, s30, 24576
    v_lshlrev_b32 v2, 4, v1
    v_add_u32 v2, s35, v2
    """)
    ACC = 16; FB = 112; NF = 40
    frags = []
    for nt in range(4):
        frags.append((24+nt*4, [(2, 0, f"ds_read_b64_tr_b16 {{dst}}, v{12+nt}"),
                                (2, 2, f"ds_read_b64_tr_b16 {{dst}}, v{12+nt} offset:4096")]))
    for mt in range(6):
        frags.append((mt*4, [(4, 0, f"ds_read_b128 {{dst}}, v11 offset:{mt*256}")]))
    mf = [(ACC + (mt*4+nt)*4, mt*4, 24+nt*4) for mt in range(6) for nt in range(4)]
    consumer_full(A, "g2", 36, S2_NS, S2_ST, [(11,6),(12,7),(13,8),(14,9),(15,10)], frags, NF, FB, mf, "s44", "s47",
                  dump=lambda acc: f"ds_write_b128 v2, {vr(acc,4)} offset:{(acc-ACC)//4*1024}")
    A.e("s_waitcnt lgkmcnt(0)")
    A.lab(epi)
    A.e(f"""
    s_mul_i32 s58, s31, 6
    s_add_u32 s58, s58, s32
    s_lshl_b32 s58, s58, 1
    s_add_u32 s59, s58, s57
    s_xor_b32 s58, s59, 1
    s_mul_i32 s72, s58, 24576
    s_mul_i32 s73, s59, 24576
    s_xor_b32 s74, s57, 1
    s_mul_i32 s74, s74, 49152
    s_mul_i32 s75, s57, 49152
    s_lshl_b32 s36, s31, 1
    s_add_u32 s36, s36, s57
    s_mul_i32 s34, s36, {64*1152}
    s_mul_i32 s35, s32, 192
    s_add_u32 s34, s34, s35
    s_lshl_b32 s76, s36, 1
    s_cmp_ge_u32 s32, 3
    s_cselect_b32 s37, 576, 0
    s_addc_u32 s76, s76, 0
    s_sub_u32 s37, s35, s37
    s_mul_i32 s35, s76, 36864
    s_add_u32 s37, s37, s35
    s_lshl_b32 s35, s36, 7
    s_mov_b32 s36, {(2**32+11)//12}
    """)
    for r in range(2):
        b = 120 + 8*r
        A.e(f"""
        v_add_u32 v2, {512*r}, v0
        v_mul_hi_u32 v3, v2, s36
        v_mul_u32_u24 v4, 12, v3
        v_sub_u32 v4, v2, v4
        v_mul_u32_u24 v5, 1152, v3
        v_lshl_add_u32 v{b+1}, v4, 4, v5
        v_mul_u32_u24 v5, 576, v3
        v_lshl_add_u32 v{b+2}, v4, 4, v5
        v_lshlrev_b32 v{b+3}, 1, v3
        v_lshlrev_b32 v{b+4}, 4, v2
        v_lshrrev_b32 v7, 1, v4
        v_lshlrev_b32 v7, 12, v7
        v_lshrrev_b32 v8, 4, v3
        v_lshl_add_u32 v7, v8, 10, v7
        v_and_b32 v8, 1, v4
        v_lshl_add_u32 v7, v8, 9, v7
        v_and_b32 v8, 15, v3
        v_lshl_add_u32 v{b}, v8, 4, v7
        """)
    A.e("s_barrier")
    def gather(r, sbase, dst):
        b = 120 + 8*r
        A.e(f"""
        v_add_u32 v7, {sbase}, v{b}
        ds_read_b128 v[{dst}:{dst+3}], v7
        ds_read_b128 v[{dst+4}:{dst+7}], v7 offset:256
        ds_read_b128 v[{dst+8}:{dst+11}], v7 offset:24576
        ds_read_b128 v[{dst+12}:{dst+15}], v7 offset:24832
        """)
    def addp(dst):
        for i in range(4): A.e(f"v_pk_add_f32 v[{dst+2*i}:{dst+2*i+1}], v[{dst+2*i}:{dst+2*i+1}], v[{dst+8+2*i}:{dst+9+2*i}]")
    def send(r, dst):
        b = 120 + 8*r
        A.e(f"buffer_store_dwordx4 v[{dst}:{dst+3}], v{b+4}, s[68:71], s72 offen sc1")
        A.e(f"s_add_u32 s77, s72, 12288\nbuffer_store_dwordx4 v[{dst+4}:{dst+7}], v{b+4}, s[68:71], s77 offen sc1")
    hi = A.newlab("g2hi"); j1 = A.newlab("g2j1")
    A.e(f"s_cmp_ge_u32 s30, 4\ns_cbranch_scc1 {hi}")
    gather(0, "s74", 16); gather(1, "s74", 32); gather(0, "s75", 48)
    A.e("s_waitcnt lgkmcnt(8)"); addp(16); send(0, 16)
    A.e("s_waitcnt lgkmcnt(4)"); addp(32); send(1, 32)
    gather(1, "s75", 64)
    A.e("buffer_load_ushort v97, v131, s[60:63], s35 offen")
    A.e(f"s_branch {j1}")
    A.lab(hi)
    gather(0, "s74", 16); gather(0, "s75", 48)
    A.e("s_waitcnt lgkmcnt(4)"); addp(16); send(0, 16)
    A.lab(j1)
    A.e("buffer_load_ushort v96, v123, s[60:63], s35 offen")
    A.e("s_waitcnt vmcnt(0) lgkmcnt(0)\ns_barrier")
    if opt.get("epi_stamps"): A.stamp(1)
    addp(48); addp(64)
    pl = A.newlab("g2poll"); pd = A.newlab("g2pd")
    A.e(f"""
    s_cmp_lg_u32 s30, 7
    s_cbranch_scc1 {pd}
    s_add_u32 s33, s58, 64
    s_lshl_b32 s33, s33, 7
    v_mov_b32 v3, s33
    v_mov_b32 v4, 1
    s_mov_b64 exec, 1
    buffer_store_dword v4, v3, s[64:67], 0 offen sc1
    s_mov_b64 exec, 3
    s_add_u32 s33, s59, 64
    s_lshl_b32 s33, s33, 7
    s_lshl_b32 s76, s76, 7
    v_mov_b32 v3, s33
    v_writelane_b32 v3, s76, 1
    s_mov_b32 s78, 0
    {pl}:
    buffer_load_dword v4, v3, s[64:67], 0 offen sc1
    s_add_u32 s78, s78, 1
    s_waitcnt vmcnt(0)
    v_cmp_ne_u32 vcc, 0, v4
    s_cmp_gt_u32 s78, 400000
    s_cbranch_scc1 {pl}_x
    s_cmp_eq_u32 vcc_lo, 3
    s_cbranch_scc1 {pl}_x
    s_sleep 1
    s_branch {pl}
    {pl}_x:
    s_mov_b64 exec, -1
    {pd}:
    s_barrier
    s_add_u32 s77, s73, 12288
    """)
    if opt.get("epi_stamps"): A.stamp(2)
    def loads(r):
        b = 120 + 8*r; e = 16 + 16*r
        A.e(f"""
        buffer_load_dwordx4 v[{e}:{e+3}], v{b+4}, s[68:71], s73 offen sc1
        buffer_load_dwordx4 v[{e+4}:{e+7}], v{b+4}, s[68:71], s77 offen sc1
        buffer_load_dwordx4 v[{e+8}:{e+11}], v{b+2}, s[24:27], s37 offen sc1
        """)
    def final(r, w):
        b = 120 + 8*r; e = 16 + 16*r; d = 48 + 16*r
        A.e(f"v_lshlrev_b32 v98, 16, v{96+r}\nv_lshlrev_b32 v99, 16, v{96+r}")
        for i in range(4): A.e(f"v_pk_add_f32 v[{d+2*i}:{d+2*i+1}], v[{d+2*i}:{d+2*i+1}], v[98:99]")
        A.e(f"s_waitcnt vmcnt({w})")
        for i in range(4): A.e(f"v_pk_add_f32 v[{d+2*i}:{d+2*i+1}], v[{d+2*i}:{d+2*i+1}], v[{e+2*i}:{e+2*i+1}]")
        for i in range(4):
            A.e(f"v_lshlrev_b32 v{e+2*i}, 16, v{e+8+i}\nv_and_b32 v{e+1+2*i}, 0xffff0000, v{e+8+i}")
        for i in range(4): A.e(f"v_pk_add_f32 v[{d+2*i}:{d+2*i+1}], v[{d+2*i}:{d+2*i+1}], v[{e+2*i}:{e+2*i+1}]")
        o = 100 + 4*r
        for i in range(4): A.e(f"v_cvt_pk_bf16_f32 v{o+i}, v{d+2*i}, v{d+1+2*i}")
        A.e(f"buffer_store_dwordx4 v[{o}:{o+3}], v{b+1}, s[20:23], s34 offen")
    hi2 = A.newlab("g2hi2")
    loads(0)
    A.e(f"s_cmp_ge_u32 s30, 4\ns_cbranch_scc1 {hi2}")
    loads(1); final(0, 3); final(1, 1)
    A.e(f"s_branch {done}")
    A.lab(hi2)
    final(0, 0)
    A.e(f"s_branch {done}")

S4_PB = 24576; S4_WB = 16384; S4_ST = S4_PB + S4_WB; S4_NS = 4
SZ_EX4 = 48*4*4*24576
def gemm2_split4(A, opt, done):
    A.e("s_sub_u32 s33, s29, 8")
    A.sdiv("s56", "s33", 3, "s34")
    A.e(f"""
    s_mul_i32 s34, s56, 3
    s_sub_u32 s32, s33, s34
    s_lshr_b32 s34, s28, 2
    s_lshl_b32 s34, s34, 3
    s_add_u32 s31, s56, s34
    s_and_b32 s57, s28, 3
    """)
    epi = A.newlab("g2epi"); cons = A.newlab("g2cons")
    def pre_epi():
        A.srd(20, 52, 53, SZ_X)
        A.srd_off(24, 4, 5, WS_AP, SZ_X)
        A.srd(60, 8, 9, SZ_B2)
        A.srd_off(64, 4, 5, WS_FL, SZ_FL)
        A.srd_off(68, 4, 5, WS_EX, SZ_EX4)
        A.e(f"""
        s_lshr_b32 s33, s57, 1
        s_lshl_b32 s36, s31, 1
        s_add_u32 s36, s36, s33
        s_and_b32 s33, s57, 1
        s_lshl_b32 s37, s32, 1
        s_add_u32 s37, s37, s33
        s_mul_i32 s34, s36, {64*1152}
        s_mul_i32 s35, s37, 192
        s_add_u32 s74, s34, s35
        s_lshl_b32 s76, s36, 1
        s_cmp_ge_u32 s37, 3
        s_cselect_b32 s37, 576, 0
        s_addc_u32 s76, s76, 0
        s_sub_u32 s37, s35, s37
        s_mul_i32 s35, s76, 36864
        s_add_u32 s75, s37, s35
        s_lshl_b32 s35, s36, 7
        s_mul_i32 s58, s31, 3
        s_add_u32 s58, s58, s32
        s_lshl_b32 s58, s58, 2
        s_add_u32 s59, s58, s57
        s_mul_i32 s73, s59, {4*24576}
        v_and_b32 v2, 15, v1
        v_lshrrev_b32 v3, 4, v1
        v_and_b32 v4, 1, v3
        v_lshlrev_b32 v4, 5, v4
        v_lshrrev_b32 v3, 1, v3
        v_lshl_add_u32 v4, v3, 4, v4
        s_and_b32 s33, s30, 3
        s_lshl_b32 s33, s33, 4
        v_add_u32 v2, s33, v2
        v_mul_u32_u24 v5, 1152, v2
        v_add_u32 v240, v5, v4
        v_mul_u32_u24 v5, 576, v2
        v_add_u32 v241, v5, v4
        v_lshlrev_b32 v5, 1, v2
        buffer_load_ushort v242, v5, s[60:63], s35 offen
        v_lshlrev_b32 v243, 4, v1
        """)
    A.e(f"s_cmp_lt_u32 s30, 4\ns_cbranch_scc1 {cons}")
    A.srd_off(12, 4, 5, WS_U, SZ_U)
    A.srd(16, 6, 7, SZ_W2)
    CL = opt.get("g2_cl", 3); nseg = opt.get("g2_nseg", 3)
    A.e(f"""
    s_mul_i32 {LR['bP']}, s32, 3072
    s_mul_i32 s33, s57, {18*8*9216}
    s_add_u32 {LR['bP']}, {LR['bP']}, s33
    s_lshl_b32 {LR['bW']}, s31, 8
    s_mul_i32 s33, s57, {18*64*4096}
    s_add_u32 {LR['bW']}, {LR['bW']}, s33
    """)
    if nseg > 1:
        A.e(f"s_add_u32 s33, s56, s32")
        A.sdiv("s34", "s33", nseg, "s35")
        A.e(f"s_mul_i32 s34, s34, {nseg}\ns_sub_u32 s33, s33, s34\ns_mul_i32 {LR['K']}, s33, {CL//nseg}")
    else: A.e(f"s_mov_b32 {LR['K']}, 0"); CL = 0
    flP = opt.get("g2_flP", ""); flW = opt.get("g2_flW", "")
    A.e(f"""
    s_sub_u32 s33, s30, 4
    v_lshrrev_b32 v3, 4, v1
    v_and_b32 v4, 15, v1
    v_lshlrev_b32 v5, 1, v3
    v_xor_b32 v4, v4, v5
    v_lshlrev_b32 v3, 12, v3
    v_lshl_add_u32 v3, v4, 4, v3
    s_lshl_b32 s35, s33, 16
    v_add_u32 v10, s35, v3
    v_xor_b32 v11, 128, v10
    v_add_u32 v11, {16384-1024}, v11
    v_add_u32 v12, {32768-2048}, v10
    v_add_u32 v13, {32768-2048}, v11
    s_mul_i32 s34, s33, {2*9216}
    v_lshlrev_b32 v14, 4, v1
    v_add_u32 v14, s34, v14
    v_add_u32 v15, 9216, v14
    s_lshl_b32 s50, s33, 12
    s_add_u32 s50, s50, {S4_PB}
    s_mul_i32 s51, s33, 6144
    s_add_u32 s72, s51, 3072
    """)
    runs = [("s50", [(10+t, "s[16:19]", 'W', t*1024, flW) for t in range(4)]),
            ("s51", [(14, "s[12:15]", 'P', t*1024, flP) for t in range(3)]),
            ("s72", [(15, "s[12:15]", 'P', t*1024, flP) for t in range(3)])]
    loader(A, "g2", runs, 18, S4_NS, S4_ST, 1, 8*9216, 64*4096, CL, LR)
    pre_epi()
    pl = A.newlab("g2poll")
    A.e(f"""
    s_cmp_lg_u32 s30, 4
    s_cbranch_scc1 {epi}
    s_add_u32 s33, s59, 64
    s_lshl_b32 s33, s33, 7
    s_lshl_b32 s34, s76, 7
    v_lshlrev_b32 v3, 2, v1
    v_add_u32 v3, s33, v3
    s_mov_b32 m0, s57
    v_writelane_b32 v3, s34, m0
    s_mov_b64 exec, 15
    s_mov_b32 s78, 0
    {pl}:
    buffer_load_dword v4, v3, s[64:67], 0 offen sc1
    s_add_u32 s78, s78, 1
    s_waitcnt vmcnt(0)
    v_cmp_ne_u32 vcc, 0, v4
    s_cmp_gt_u32 s78, 400000
    s_cbranch_scc1 {pl}_x
    s_cmp_eq_u32 vcc_lo, 15
    s_cbranch_scc1 {pl}_x
    s_sleep 1
    s_branch {pl}
    {pl}_x:
    s_mov_b64 exec, -1
    s_branch {epi}
    """)
    A.lab(cons)
    pre_epi()
    A.e(f"""
    s_and_b32 s33, s30, 1
    s_lshr_b32 s34, s30, 1
    v_and_b32 v2, 15, v1
    v_lshrrev_b32 v3, 4, v1
    v_mul_u32_u24 v4, 3072, v3
    v_lshl_add_u32 v4, v2, 4, v4
    s_mul_i32 s35, s33, 1536
    v_add_u32 v6, s35, v4
    v_lshrrev_b32 v5, 2, v2
    v_lshl_add_u32 v4, v3, 2, v5
    v_and_b32 v5, 7, v4
    s_lshl_b32 s35, s34, 2
    v_xor_b32 v5, s35, v5
    v_lshlrev_b32 v4, 8, v4
    v_lshl_add_u32 v4, v5, 5, v4
    v_and_b32 v5, 3, v2
    v_lshl_add_u32 v4, v5, 3, v4
    v_add_u32 v7, {S4_PB}, v4
    v_xor_b32 v8, 32, v7
    v_xor_b32 v9, 64, v7
    v_xor_b32 v10, 96, v7
    s_add_u32 s72, s58, s30
    s_lshl_b32 s77, s72, 2
    s_add_u32 s77, s77, s57
    s_mul_i32 s77, s77, 24576
    """)
    ACC = 16; FB = 112; NF = 40
    def frags_of(kc):
        fr = []
        for nt in range(4):
            fr.append((24+nt*4, [(2, 0, f"ds_read_b64_tr_b16 {{dst}}, v{12+nt} offset:{kc*8192}"),
                                 (2, 2, f"ds_read_b64_tr_b16 {{dst}}, v{12+nt} offset:{kc*8192+4096}")]))
        for mt in range(6):
            fr.append((mt*4, [(4, 0, f"ds_read_b128 {{dst}}, v11 offset:{kc*12288+mt*256}")]))
        return fr
    mf = [(ACC + (mt*4+nt)*4, mt*4, 24+nt*4) for mt in range(6) for nt in range(4)]
    ms = consumer_sub2(A, "g2", 18, S4_NS, S4_ST, [(11,6),(12,7),(13,8),(14,9),(15,10)], frags_of, NF, FB, mf, "s44", "s47")
    own = A.newlab("g2own")
    accs = [m[0] for m in mf]
    A.e(f"s_cmp_eq_u32 s30, s57\ns_cbranch_scc1 {own}")
    def snd(acc):
        t = (acc-ACC)//4
        pre = f"s_add_u32 s77, s77, 4096\n" if (t % 4 == 0 and t) else ""
        return pre + f"buffer_store_dwordx4 {vr(acc,4)}, v243, s[68:71], s77 offen offset:{(t%4)*1024} sc1"
    drain(A, ms, accs, snd)
    A.stamp(2)
    A.e(f"""
    s_add_u32 s72, s72, 64
    s_lshl_b32 s72, s72, 7
    s_lshl_b32 s33, s57, 2
    s_add_u32 s72, s72, s33
    v_mov_b32 v3, s72
    v_mov_b32 v4, 1
    s_waitcnt vmcnt(0)
    s_mov_b64 exec, 1
    buffer_store_dword v4, v3, s[64:67], 0 offen sc1
    s_mov_b64 exec, -1
    s_branch {epi}
    """)
    A.lab(own)
    drain(A, ms, accs, lambda acc: f"ds_write_b128 v243, {vr(acc,4)} offset:{(acc-ACC)//4*1024}")
    A.stamp(2)
    A.e("s_waitcnt lgkmcnt(0)")
    A.lab(epi)
    A.e(f"""
    s_add_u32 s33, s57, 1
    s_and_b32 s33, s33, 3
    s_mul_i32 s36, s33, 24576
    s_add_u32 s33, s57, 2
    s_and_b32 s33, s33, 3
    s_mul_i32 s37, s33, 24576
    s_add_u32 s33, s57, 3
    s_and_b32 s33, s33, 3
    s_mul_i32 s38, s33, 24576
    s_and_b32 s33, s30, 3
    s_lshl_b32 s33, s33, 10
    s_lshr_b32 s34, s30, 2
    s_lshl_b32 s35, s34, 13
    s_add_u32 s33, s33, s35
    v_add_u32 v243, s33, v243
    s_lshl_b32 s34, s34, 6
    s_add_u32 s74, s74, s34
    s_add_u32 s75, s75, s34
    s_add_u32 s36, s36, s73
    s_add_u32 s37, s37, s73
    s_add_u32 s38, s38, s73
    s_barrier
    """)
    if opt.get("epi_stamps"): A.stamp(1)
    def loads(r):
        e = 16 + 40*r
        if r: A.e("v_add_u32 v244, 16384, v243")
        va = 244 if r else 243
        A.e(f"v_add_u32 v245, 4096, v{va}")
        for j, sb in enumerate(("s36", "s37", "s38")):
            A.e(f"buffer_load_dwordx4 {vr(e+8+8*j,4)}, v{va}, s[68:71], {sb} offen sc1")
            A.e(f"buffer_load_dwordx4 {vr(e+12+8*j,4)}, v245, s[68:71], {sb} offen sc1")
        A.e(f"buffer_load_dwordx4 {vr(e+32,4)}, v241, s[24:27], s75 offen offset:{128*r} sc1")
        A.e(f"ds_read_b128 {vr(e,4)}, v{va}\nds_read_b128 {vr(e+4,4)}, v{va} offset:4096")
    def pk(d, a):
        for i in range(4): A.e(f"v_pk_add_f32 v[{d+2*i}:{d+2*i+1}], v[{d+2*i}:{d+2*i+1}], v[{a+2*i}:{a+2*i+1}]")
    def final(r, vw):
        e = 16 + 40*r
        A.e(f"s_waitcnt vmcnt({vw+3}) lgkmcnt(0)")
        pk(e, e+8);
        pk(e, e+16)
        A.e(f"s_waitcnt vmcnt({vw+1})")
        pk(e, e+24)
        A.e(f"v_lshlrev_b32 v{e+8}, 16, v242\nv_lshlrev_b32 v{e+9}, 16, v242")
        for i in range(4): A.e(f"v_pk_add_f32 v[{e+2*i}:{e+2*i+1}], v[{e+2*i}:{e+2*i+1}], v[{e+8}:{e+9}]")
        A.e("s_nop 1")
        for i in range(4): A.e(f"v_permlane16_swap_b32 v{e+i}, v{e+4+i}")
        A.e(f"s_waitcnt vmcnt({vw})")
        for i in range(4):
            A.e(f"v_lshlrev_b32 v{e+16+2*i}, 16, v{e+32+i}\nv_and_b32 v{e+17+2*i}, 0xffff0000, v{e+32+i}")
        pk(e, e+16)
        o = e + 36
        for i in range(4): A.e(f"v_cvt_pk_bf16_f32 v{o+i}, v{e+2*i}, v{e+1+2*i}")
        A.e(f"buffer_store_dwordx4 v[{o}:{o+3}], v240, s[20:23], s74 offen offset:{128*r}")
    hi2 = A.newlab("g2hi2")
    loads(0)
    A.e(f"s_cmp_ge_u32 s30, 4\ns_cbranch_scc1 {hi2}")
    loads(1); final(0, 7); final(1, 1)
    A.e(f"s_branch {done}")
    A.lab(hi2)
    final(0, 0)
    A.e(f"s_branch {done}")

def ocalc(A, opt):
    B = 100
    A.e(f"""
    v_and_b32 v{B}, 31, v1
    v_lshrrev_b32 v{B+1}, 5, v1
    v_min_u32 v{B+2}, 19, v{B}
    v_cmp_eq_u32 vcc, 20, v{B}
    v_mul_u32_u24 v{B+4}, {OSTR}, v{B}
    s_mul_i32 s36, s30, 144
    v_cndmask_b32_e64 v{B+2}, v{B+2}, 18, vcc
    v_cmp_eq_u32 vcc, 1, v{B+1}
    v_add_u32 v{B+4}, s36, v{B+4}
    v_lshl_add_u32 v{B+6}, v{B+1}, 3, v{B+4}
    v_cndmask_b32_e64 v{B+3}, v{B+2}, 19, vcc
    v_lshl_add_u32 v{B+4}, v{B+1}, 4, v{B+4}
    v_add_u32 v{B+5}, {32*OSTR}, v{B+4}
    v_mul_u32_u24 v{B+2}, 80, v{B+2}
    v_lshl_add_u32 v{B+2}, v{B+1}, 5, v{B+2}
    v_mul_u32_u24 v{B+3}, 80, v{B+3}
    s_mul_i32 s36, s30, 6400
    s_add_u32 s36, s36, {KVB}
    v_add_u32 v{B+2}, s36, v{B+2}
    v_add_u32 v{B+3}, s36, v{B+3}
    s_mov_b64 s[68:69], vcc
    """)
    KF = 108; PF = 132
    for p in range(2):
        for sh in range(2):
            for i in range(1, 4): A.e(f"v_mov_b32 v{PF+16*p+8*sh+4+i}, 0")
    AF = 164
    A.e(f"v_mov_b32 v{AF+6}, 0\nv_mov_b32 v{AF+7}, 0")
    def reads(hh):
        p = hh & 1; k = KF + 12*p
        A.e(f"ds_read_b128 {vr(k,4)}, v{B+2} offset:{1600*hh}\nds_read_b128 {vr(k+4,4)}, v{B+2} offset:{1600*hh+16}\nds_read_b128 {vr(k+8,4)}, v{B+3} offset:{1600*hh+64}")
        for sh in range(2):
            q = PF + 16*p + 8*sh
            A.e(f"ds_read2_b32 {vr(q,2)}, v{B+4+sh} offset0:{9*hh} offset1:{9*hh+1}\nds_read2_b32 {vr(q+2,2)}, v{B+4+sh} offset0:{9*hh+2} offset1:{9*hh+3}")
            A.e(f"ds_read_b32 v{q+4}, v{B+4+sh} offset:{36*hh+32}")
    DD = 16
    rnd = opt.get("round_o", True)
    reads(0)
    for hh in range(4):
        p = hh & 1; k = KF + 12*p
        A.e("s_waitcnt lgkmcnt(0)")
        if hh < 3: reads(hh+1)
        for i in range(6): A.e(f"v_cvt_pk_bf16_f32 v{AF+i}, v{k+2*i}, v{k+2*i+1}")
        A.e("s_nop 1")
        for sh in range(2):
            d = DD + 16*sh; q = PF + 16*p + 8*sh
            A.e(f"v_mfma_f32_32x32x16_bf16 {vr(d,16)}, {vr(AF,4)}, {vr(q,4)}, 0")
            A.e(f"v_mfma_f32_32x32x16_bf16 {vr(d,16)}, {vr(AF+4,4)}, {vr(q+4,4)}, {vr(d,16)}")
        A.e("s_nop 7\ns_nop 3")
        for sh in range(2):
            d = DD + 16*sh
            A.e(f"v_cndmask_b32 v48, v{d+10}, v{d+8}, s[68:69]")
            if rnd: A.e("v_cvt_pk_bf16_f32 v48, v48, v48\nv_and_b32 v48, 0xffff0000, v48")
            A.e(f"v_add_f32 v48, {hex(f2u(1e-6))}, v48")
            if rnd: A.e("v_cvt_pk_bf16_f32 v48, v48, v48\nv_and_b32 v48, 0xffff0000, v48")
            A.e("v_rcp_f32 v48, v48")
            if rnd:
                for i in range(5): A.e(f"v_cvt_pk_bf16_f32 v{50+i}, v{d+2*i}, v{d+2*i+1}")
                for i in range(5): A.e(f"v_lshlrev_b32 v{d+2*i}, 16, v{50+i}\nv_and_b32 v{d+2*i+1}, 0xffff0000, v{50+i}")
            else: A.e("s_nop 0")
            A.e("v_mov_b32 v49, v48")
            for i in range(5): A.e(f"v_pk_mul_f32 v[{d+2*i}:{d+2*i+1}], v[{d+2*i}:{d+2*i+1}], v[48:49]")
            for i in range(5): A.e(f"v_cvt_pk_bf16_f32 v{50+i}, v{d+2*i}, v{d+2*i+1}")
            off = 36*hh + sh*32*OSTR
            A.e(f"ds_write_b32 v{B+6}, v50 offset:{off}\nds_write_b32 v{B+6}, v51 offset:{off+4}")
            A.e(f"ds_write_b32 v{B+6}, v52 offset:{off+16}\nds_write_b32 v{B+6}, v53 offset:{off+20}")
            A.e(f"s_mov_b32 exec_hi, 0\nds_write_b32 v{B+6}, v54 offset:{off+32}\ns_mov_b32 exec_hi, -1")
    A.e("s_waitcnt lgkmcnt(0)")

def at_prefetch(A, opt):
    r0, r1 = opt.get("pf_w2", (0, 0))
    if r1 <= r0: return
    A.srd(16, 6, 7, SZ_W2)
    A.e(f"""
    v_lshrrev_b32 v2, 2, v0
    v_and_b32 v3, 3, v0
    v_lshlrev_b32 v2, 12, v2
    v_lshl_add_u32 v2, v3, 7, v2
    s_lshl_b32 s34, s28, 9
    s_lshl_b32 s35, s29, 19
    s_add_u32 s34, s34, s35
    s_add_u32 s34, s34, {r0*4096}
    """)
    n = (r1 - r0 + 1023)//1024
    for i in range(n):
        A.e(f"buffer_load_dword v229, v2, s[16:19], s34 offen{opt.get('pf_w2_fl','')}\ns_add_u32 s34, s34, {1024*4096}")
    ur0, ur1 = opt.get("pf_u", (0, 0))
    if ur1 > ur0:
        A.srd_off(12, 4, 5, WS_U, SZ_U)
        A.e(f"v_lshlrev_b32 v2, 7, v0\ns_lshl_b32 s34, s29, 16\ns_add_u32 s34, s34, {ur0*73728}")
        for i in range(((ur1-ur0)*73728 + 8*65536 - 1)//(8*65536)):
            A.e(f"buffer_load_dword v229, v2, s[12:15], s34 offen\ns_add_u32 s34, s34, {8*65536}")

def attn(A, opt, done):
    if opt.get("g2_split", 4) == 4:
        A.e(f"""
        s_lshr_b32 s31, s28, 2
        s_lshl_b32 s31, s31, 4
        s_bfe_u32 s33, s28, 0x10001
        s_add_u32 s31, s31, s33
        s_and_b32 s33, s28, 1
        s_lshl_b32 s33, s33, 3
        s_add_u32 s31, s31, s33
        s_and_b32 s33, s29, 6
        s_add_u32 s31, s31, s33
        s_and_b32 s32, s29, 1
        """)
    elif opt.get("g2_split"):
        A.e(f"""
        s_lshr_b32 s31, s28, 1
        s_lshl_b32 s31, s31, 3
        s_and_b32 s33, s28, 1
        s_add_u32 s31, s31, s33
        s_and_b32 s33, s29, 6
        s_add_u32 s31, s31, s33
        s_and_b32 s32, s29, 1
        """)
    else:
        A.e(f"""
        s_lshl_b32 s31, s28, 2
        s_lshr_b32 s33, s29, 1
        s_add_u32 s31, s31, s33
        s_and_b32 s32, s29, 1
        """)
    at_prefetch(A, opt)
    A.srd_off(12, 4, 5, WS_PQ, SZ_X)
    A.srd_off(60, 4, 5, WS_KV, SZ_KV)
    A.e(f"""
    v_lshlrev_b32 v2, 4, v0
    s_lshl_b32 s34, s30, 10
    s_mul_i32 s35, s31, {64*1152}
    s_mov_b32 s36, {(2**32+72)//73}
    """)
    for k in range(7):
        l = A.newlab("atk")
        if k == 6: A.e(f"s_cmp_ge_u32 s30, 2\ns_cbranch_scc1 {l}")
        A.e(f"s_add_u32 m0, s34, {KVB+8192*k}\ns_mov_b32 s37, {8192*k}\nbuffer_load_dwordx4 v2, s[60:63], s37 offen lds")
        if k == 6: A.lab(l)
    for k in range(10):
        l = A.newlab("atq")
        if k == 9: A.e(f"s_cmp_ge_u32 s30, 1\ns_cbranch_scc1 {l}")
        A.e(f"""
        v_add_u32 v3, {512*k}, v0
        v_mul_hi_u32 v4, v3, s36
        s_add_u32 m0, s34, {8192*k}
        v_sub_u32 v3, v3, v4
        v_lshlrev_b32 v3, 4, v3
        buffer_load_dwordx4 v3, s[12:15], s35 offen lds
        """)
        if k == 9: A.lab(l)
    A.srd(16, 10, 11, SZ_WO)
    A.srd(20, 70, 71, SZ_X)
    A.srd_off(24, 4, 5, WS_AP, SZ_X)
    A.srd_off(64, 4, 5, WS_FL, SZ_FL)
    def xloads():
        A.e(f"s_mul_i32 s57, s32, 576\ns_add_u32 s57, s57, s35\ns_mov_b32 s36, {(2**32+35)//36}")
        for r in range(5):
            A.e(f"""
            v_add_u32 v3, {512*r}, v0
            v_mul_hi_u32 v4, v3, s36
            v_lshlrev_b32 v3, 4, v3
            v_lshl_add_u32 v{230+r}, v4, 4, v3
            v_mul_u32_u24 v4, 576, v4
            v_add_u32 v3, v3, v4
            buffer_load_dwordx4 {vr(236+4*r,4)}, v3, s[20:23], s57 offen
            """)
    fin = A.newlab("atfin"); cons = A.newlab("atcons")
    A.e(f"s_cmp_lt_u32 s30, 4\ns_cbranch_scc1 {cons}")
    A.e(f"s_mul_i32 {LR['bW']}, s32, 576\ns_mov_b32 {LR['K']}, 0")
    A.e(f"""
    s_sub_u32 s33, s30, 4
    s_lshl_b32 s34, s33, 8
    v_add_u32 v2, s34, v1
    s_lshl_b32 s50, s33, 12
    s_lshl_b32 s51, s33, 10
    s_add_u32 s51, s51, 16384
    s_cmp_lt_u32 s33, 2
    s_cselect_b32 s53, 1, 0
    s_lshl_b32 s34, s33, 6
    s_add_u32 s34, s34, 1024
    v_add_u32 v7, s34, v1
    s_mov_b32 s34, {(2**32+35)//36}
    """)
    for t in range(5):
        imm = t*1024 if t < 4 else 0
        A.e(f"v_add_u32 v3, {t*64}, v2" if t < 4 else "v_mov_b32 v3, v7")
        A.e(f"""
        v_mul_hi_u32 v4, v3, s34
        v_mul_u32_u24 v5, 36, v4
        v_sub_u32 v5, v3, v5
        v_bfe_u32 v6, v4, 3, 1
        v_lshlrev_b32 v6, 1, v6
        v_xor_b32 v5, v5, v6
        v_mul_u32_u24 v4, 1152, v4
        v_lshl_add_u32 v4, v5, 4, v4
        v_subrev_u32 v{10+t}, {imm}, v4
        """)
    def hook():
        xloads()
        A.e("s_waitcnt vmcnt(13)\ns_barrier")
        ocalc(A, opt)
    loader(A, "at", [("s50", [(10+t, "s[16:19]", 'W', t*1024, "") for t in range(4)])], 18, AT_NS, AT_ST, 2, 0, 32*1152, 0, LR,
           hook=hook, opt_run=("s51", [(14, "s[16:19]", 'W', 0, "")]), sBig="s53", lds_base=OT)
    A.e(f"s_branch {fin}")
    A.lab(cons)
    xloads()
    A.e("s_waitcnt vmcnt(5)\ns_barrier")
    ocalc(A, opt)
    A.e(f"""
    s_and_b32 s33, s30, 1
    s_lshr_b32 s34, s30, 1
    v_and_b32 v2, 15, v1
    v_lshrrev_b32 v3, 4, v1
    s_lshl_b32 s35, s34, 5
    v_add_u32 v4, s35, v2
    v_mul_u32_u24 v9, {ESTR}, v4
    v_lshl_add_u32 v9, v3, 3, v9
    v_mul_u32_u24 v4, {OSTR}, v4
    v_lshl_add_u32 v13, v3, 4, v4
    v_subrev_u32 v13, 64, v13
    v_lshrrev_b32 v5, 2, v2
    v_lshl_add_u32 v4, v3, 3, v5
    v_mul_u32_u24 v4, 576, v4
    v_and_b32 v5, 3, v2
    v_lshl_add_u32 v4, v5, 3, v4
    s_mul_i32 s35, s33, 288
    s_add_u32 s36, s35, {AT_EP}
    v_add_u32 v9, s36, v9
    s_add_u32 s35, s35, {OT}
    v_add_u32 v4, s35, v4
    v_and_b32 v5, 1, v3
    v_lshlrev_b32 v5, 5, v5
    v_add_u32 v11, v4, v5
    v_sub_u32 v12, v4, v5
    s_cmp_eq_u32 s33, 0
    s_cbranch_scc1 L_atnoswap
    v_swap_b32 v11, v12
    L_atnoswap:
    """)
    ACC = 16; SB = 88; RB = 104
    stat = [(nt*4, [(4, 0, f"ds_read_b128 {{dst}}, v13 offset:{nt*16*OSTR}")]) for nt in range(2)]
    strm = []
    for t in range(9):
        va = 14 if t % 2 == 0 else 15
        strm.append([(2, 0, f"ds_read_b64_tr_b16 {{dst}}, v{va} offset:{t*32}"),
                     (2, 2, f"ds_read_b64_tr_b16 {{dst}}, v{va} offset:{t*32+4*576}")])
    def mf(j, sb, rb, first):
        return [f"{M16} {vr(ACC+(j*2+nt)*4,4)}, {vr(rb,4)}, {vr(sb+nt*4,4)}, {'0' if first else vr(ACC+(j*2+nt)*4,4)}" for nt in range(2)]
    consumer_ring(A, "at", 18, AT_NS, AT_ST, [(14,11),(15,12)], stat, 8, SB, strm, 9, RB, 5, mf, "s44", "s47",
                  addr_extra="v_add_u32 v13, 64, v13")
    A.e("s_nop 7")
    for t in range(9):
        for nt in range(2):
            a = ACC + (t*2+nt)*4; p = 140 + (t*2+nt)*2
            A.e(f"v_cvt_pk_bf16_f32 v{p}, v{a}, v{a+1}\nv_cvt_pk_bf16_f32 v{p+1}, v{a+2}, v{a+3}")
            A.e(f"ds_write_b64 v9, v[{p}:{p+1}] offset:{t*32+nt*16*ESTR}")
    A.e("s_waitcnt lgkmcnt(0)")
    A.lab(fin)
    A.e(f"""
    s_lshl_b32 s33, s31, 1
    s_add_u32 s33, s33, s32
    s_mul_i32 s34, s33, 36864
    v_lshlrev_b32 v2, 4, v0
    s_barrier
    """)
    l4 = A.newlab("ate4")
    for r in range(4): A.e(f"v_add_u32 v{230+r}, {AT_EP}, v{230+r}\nds_read_b128 {vr(16+4*r,4)}, v{230+r}")
    A.e(f"v_add_u32 v234, {AT_EP}, v234\nv_min_u32 v234, {163840-16}, v234\nds_read_b128 {vr(32,4)}, v234")
    A.e("s_waitcnt vmcnt(0)")
    for r in range(5):
        if r == 4: A.e(f"s_cmp_ge_u32 s30, 4\ns_cbranch_scc1 {l4}")
        A.e(f"s_waitcnt lgkmcnt({4-r})")
        for i in range(4):
            a = 16 + 4*r + i; x = 236 + 4*r + i
            A.e(f"""
            v_lshlrev_b32 v40, 16, v{a}
            v_and_b32 v41, 0xffff0000, v{a}
            v_lshlrev_b32 v42, 16, v{x}
            v_and_b32 v43, 0xffff0000, v{x}
            v_pk_add_f32 v[40:41], v[40:41], v[42:43]
            v_cvt_pk_bf16_f32 v{a}, v40, v41
            """)
        A.e(f"s_add_u32 s35, s34, {8192*r}\nbuffer_store_dwordx4 {vr(16+4*r,4)}, v2, s[24:27], s35 offen sc1")
    A.lab(l4)
    A.e(f"""
    s_waitcnt vmcnt(0)
    s_barrier
    s_cmp_lg_u32 s30, 0
    s_cbranch_scc1 {done}
    s_lshl_b32 s33, s33, 7
    v_mov_b32 v3, s33
    v_mov_b32 v4, 1
    s_mov_b64 exec, 1
    buffer_store_dword v4, v3, s[64:67], 0 offen sc1
    s_branch {done}
    """)

def gen_k3(A, name, opt):
    kernel_head(A, name)
    done = A.newlab("k3done"); la = A.newlab("k3attn")
    A.e(f"""
    s_cmp_ge_u32 s2, 256
    s_cbranch_scc1 {done}_x
    """)
    A.stamp_init()
    A.e(f"""
    s_load_dwordx2 s[4:5], s[0:1], {KA_WS}
    s_load_dwordx2 s[6:7], s[0:1], {KA_W2}
    s_load_dwordx2 s[8:9], s[0:1], {KA_B2}
    s_load_dwordx2 s[10:11], s[0:1], {KA_WO}
    s_load_dwordx4 s[52:55], s[0:1], {KA_OUT}
    s_load_dwordx2 s[70:71], s[0:1], {KA_X}
    s_and_b32 s28, s2, 7
    s_lshr_b32 s29, s2, 3
    v_lshrrev_b32 v2, 6, v0
    v_and_b32 v1, 63, v0
    v_readfirstlane_b32 s30, v2
    s_waitcnt lgkmcnt(0)
    s_cmp_lt_u32 s29, 8
    s_cbranch_scc1 {la}
    """)
    {0: gemm2, 2: gemm2_split, 4: gemm2_split4}[opt.get('g2_split', 4)](A, opt, done)
    A.lab(la)
    attn(A, opt, done)
    A.lab(done)
    A.stamp_out(2)
    A.lab(done + "_x")
    A.e("s_endpgm")
    kernel_desc(A, name, 256, 102)
    return f"; @launch kernel={name} grid=(256,1,1) block=(512,1,1) lds=163840"
```

```python
S=2048; D=576; F=4608; H=32; DH=18
KA_X=0; KA_WQKV=8; KA_WO=16; KA_BX=24; KA_W1=32; KA_B1=40; KA_W2=48; KA_B2=56; KA_OUT=64; KA_DBG=72; KA_WS=80
MB=1<<20
WS_XN=0*MB
WS_HT=4*MB
WS_U =8*MB
WS_PQ=16*MB
WS_KV=20*MB
WS_AP=24*MB
WS_AP4=64*MB
SZ_AP4=4*128*18*1024
WS_FL=21*MB
WS_EX=32*MB
WS_EX1=48*MB
SZ_FL=131072
FL_AT=0; FL_EX2=64; FL_EX1=256; FL_LN=448; FL_U=480; FL_QK=576; FL_EPOCH=544; FL_PQ=548
SZ_X=S*D*2; SZ_WQKV=D*3*D*2; SZ_WO=D*D*2; SZ_W1=S*F*2; SZ_W2=F*S*2; SZ_B1=F*2; SZ_B2=S*2
SZ_U=D*F*2; SZ_KV=H*20*20*4
OOB=0x7ffffff0
```

```python
import sys, os
sys.path.insert(0, os.path.dirname(os.path.abspath(__file__)))
from asm import *
from k1 import gen_k1
from k2 import gen_k2
from k3 import gen_k3
HDR = open("parallel_sum__linear_attn_block__mixer_token_mlp__prompt.s.ref").read().split("; Override")[0]
def build(opt=None):
    opt = opt or {}
    A = Asm()
    A.stamps = opt.get('stamps', False)
    A.dbgwave = opt.get('dbgwave')
    import core; core.ABL.clear(); core.ABL.update(opt.get('abl', {}))
    if opt.get("fused", True):
        import importlib
        gen_fused = importlib.import_module(opt.get('mod', 'fused')).gen_fused
        l = gen_fused(A, opt)
        if "L_code_end:" not in A.L: A.L += [".text", "L_code_end:", "  s_endpgm"]
        return HDR + l + '\n.amdgcn_target "amdgcn-amd-amdhsa--gfx950"\n' + A.text()
    l1 = gen_k1(A, "ln_kernel", opt)
    l2 = gen_k2(A, "gemm1_qkv_kernel", opt)
    l3 = gen_k3(A, "gemm2_attn_kernel", opt)
    A.L += [".text", "L_code_end:", "  s_endpgm"]
    return HDR + "\n".join([l1, l2, l3]) + '\n.amdgcn_target "amdgcn-amd-amdhsa--gfx950"\n' + A.text()
if __name__ == "__main__":
    out = sys.argv[1] if len(sys.argv) > 1 else "parallel_sum__linear_attn_block__mixer_token_mlp__prompt.s"
    opt = eval(sys.argv[2]) if len(sys.argv) > 2 else {}
    open(out, "w").write(build(opt))
    print("wrote", out)
```

```python
from asm import *
ABL = {}
class LoaderCfg:
    pass

def loader(A, tag, runs, nst, NS, stage_bytes, lag, stepP, stepW, CL, R, hook=None, opt_run=None, sBig=None, lds_base=0,
           pre=None, slot0=0, sSave=None, switch=None, post_pre=None):
    allr = list(runs) + ([opt_run] if opt_run else [])
    def cnt(rs, kind=None): return sum(1 for r in rs for x in r[1] if kind is None or x[2] == kind)
    per, perb = cnt(runs), cnt(allr)
    nP, nPb = cnt(runs, 'P'), cnt(allr, 'P')
    sK, sCnt, sLo, sHi, sSlot, sP, sW, sJ, bP, bW = (R[k] for k in ("K","Cnt","Lo","Hi","Slot","P","W","J","bP","bW"))
    def run(lo, ins, slot=None, sp=None):
        A.e(f"s_add_u32 m0, {slot if slot is not None else sSlot}, {lo}")
        A.e("s_nop 0")
        for (v, srd, kind, imm, fl) in ins:
            so = (sp or sP) if kind == 'P' else sW
            off = f" offset:{imm}" if imm else ""
            A.e(f"buffer_load_dwordx4 v{v}, {srd}, {so} offen{off}{fl} lds")
    def runs_of(kind, slot=None, sp=None):
        for lo, ins in runs:
            if kind is None or ins[0][2] == kind: run(lo, ins, slot, sp)
        if opt_run and (kind is None or opt_run[1][0][2] == kind):
            l = A.newlab("nobig")
            A.e(f"s_cmp_eq_u32 {sBig}, 0\ns_cbranch_scc1 {l}")
            run(opt_run[0], opt_run[1], slot, sp); A.lab(l)
    def offs(sp=None):
        if stepP: A.e(f"s_mul_i32 {sp or sP}, {sK}, {stepP}\ns_add_u32 {sp or sP}, {sp or sP}, {bP}")
        A.e(f"s_mul_i32 {sW}, {sK}, {stepW}\ns_add_u32 {sW}, {sW}, {bW}")
    def advance():
        A.e(f"""
        s_add_u32 {sSlot}, {sSlot}, {stage_bytes}
        s_cmp_eq_u32 {sSlot}, {lds_base + NS*stage_bytes}
        s_cselect_b32 {sSlot}, {lds_base}, {sSlot}
        s_add_u32 {sK}, {sK}, 1
        """)
        if CL:
            A.e(f"""
            s_cmp_eq_u32 {sK}, {sHi}
            s_cselect_b32 {sK}, {sLo}, {sK}
            """)
            if CL < nst and not ABL.get('nochunk'):
                A.e(f"""
                s_add_u32 {sCnt}, {sCnt}, 1
                s_cmp_eq_u32 {sCnt}, {CL}
                s_cselect_b32 {sCnt}, 0, {sCnt}
                s_cselect_b32 {sP}, {CL}, 0
                s_add_u32 {sK}, {sK}, {sP}
                s_add_u32 {sLo}, {sLo}, {sP}
                s_add_u32 {sHi}, {sHi}, {sP}
                """)
    def issue():
        if switch:
            for k, code in zip(switch[0::2], switch[1::2]):
                l = A.newlab("sw")
                A.e(f"s_cmp_lg_u32 {sK}, {k}\ns_cbranch_scc1 {l}"); A.e(code); A.lab(l)
        offs(); runs_of(None); advance()
    def waitn(a, b):
        if a != b:
            l1 = A.newlab("wb"); l2 = A.newlab("wj")
            A.e(f"s_cmp_eq_u32 {sBig}, 0\ns_cbranch_scc1 {l1}\ns_waitcnt vmcnt({min(63, b)})\ns_branch {l2}")
            A.lab(l1); A.e(f"s_waitcnt vmcnt({min(63, a)})"); A.lab(l2)
        else: A.e(f"s_waitcnt vmcnt({min(63, a)})")
    def wait(n): waitn(n*per, n*perb)
    P = NS - lag
    A.e(f"s_mov_b32 {sSlot}, {lds_base + slot0*stage_bytes}")
    if CL: A.e(f"s_mov_b32 {sCnt}, 0\ns_mov_b32 {sLo}, 0\ns_mov_b32 {sHi}, {CL}")
    lp = A.newlab(tag + "_ld"); sk = A.newlab(tag + "_sk"); nh = A.newlab(tag + "_nh")
    if pre:
        sv = int(sSave[1:])
        for j in range(P):
            offs(f"s{sv+j}"); runs_of('W'); advance()
        pre()
        A.stamp(1)
        for j in range(P):
            runs_of('P', slot=lds_base + ((slot0 + j) % NS)*stage_bytes, sp=f"s{sv+j}")
        if post_pre: post_pre()
        for j in range(P - 1):
            waitn((P-1-j)*nP + j*per, (P-1-j)*nPb + j*perb); A.e("s_barrier"); issue()
        A.e(f"s_mov_b32 {sJ}, {2*P-1}")
        A.lab(lp)
    else:
        A.e(f"s_mov_b32 {sJ}, 0")
        A.stamp(1)
        A.lab(lp)
        A.e(f"s_cmp_lt_u32 {sJ}, {P}\ns_cbranch_scc1 {sk}")
        if hook:
            A.e(f"s_cmp_lg_u32 {sJ}, {P}\ns_cbranch_scc1 {nh}")
            hook()
            A.lab(nh)
    wait(P - 1); A.e("s_barrier")
    A.lab(sk)
    issue()
    A.e(f"s_add_u32 {sJ}, {sJ}, 1\ns_cmp_lt_u32 {sJ}, {nst}\ns_cbranch_scc1 {lp}")
    for j in range(nst - P, nst):
        wait(nst - 1 - j); A.e("s_barrier")
    A.e("s_barrier")
    A.stamp(2)

def poll(A, vaddr, srd, width, mask_lo, mask_hi=0, sleep=2):
    pl = A.newlab("poll")
    ld = {1: "buffer_load_dword v4", 2: "buffer_load_dwordx2 v[4:5]", 4: "buffer_load_dwordx4 v[4:7]"}[width]
    A.e(f"s_mov_b32 exec_lo, {mask_lo}\ns_mov_b32 exec_hi, {mask_hi}\ns_mov_b32 s78, 0")
    A.lab(pl)
    A.e(f"{ld}, v{vaddr}, {srd}, 0 offen sc1\ns_add_u32 s78, s78, 1\ns_waitcnt vmcnt(0)")
    for i in range(width): A.e(f"v_xor_b32 v{4+i}, s98, v{4+i}")
    for i in range(1, width): A.e(f"v_or_b32 v4, v4, v{4+i}")
    A.e(f"""
    v_cmp_ne_u32 vcc, 0, v4
    s_cmp_gt_u32 s78, 400000
    s_cbranch_scc1 {pl}_x
    s_cmp_eq_u64 vcc, 0
    s_cbranch_scc1 {pl}_x
    s_sleep {ABL.get('sleep', sleep)}
    s_branch {pl}
    {pl}_x:
    s_mov_b64 exec, -1
    """)

def set_flag(A, soff, srd):
    A.e(f"""
    v_mov_b32 v3, {soff}
    v_mov_b32 v4, s98
    s_mov_b64 exec, 1
    buffer_store_dword v4, v3, {srd}, 0 offen sc1
    s_mov_b64 exec, -1
    """)

def consumer_full(A, tag, nst, NS, stage_bytes, bases, frags, nfreg, FB, mf, sSlot, sJ, mfma="v_mfma_f32_16x16x32_bf16", accw=4, dump=None):
    def addr():
        for vc, vb in bases: A.e(f"v_add_u32 v{vc}, {sSlot}, v{vb}")
        A.e(f"s_add_u32 {sSlot}, {sSlot}, {stage_bytes}\ns_cmp_eq_u32 {sSlot}, {NS*stage_bytes}\ns_cselect_b32 {sSlot}, 0, {sSlot}")
    def reads(p):
        out = []
        for off, ins in frags:
            for (n, so, fmt) in ins:
                out.append(fmt.format(dst=vr(FB + p*nfreg + off + so, n)))
        return out
    def mfmas(p, first=False):
        out = []
        for acc, a, b in mf:
            c = "0" if first else vr(acc, accw)
            out.append(f"{mfma} {vr(acc,accw)}, {vr(FB+p*nfreg+a,4)}, {vr(FB+p*nfreg+b,4)}, {c}")
        return out
    def body(p, first=False):
        addr()
        r = reads(p); m = mfmas(1-p, first)
        if ABL.get("noread"): r = []
        if ABL.get("nomfma"): m = m[:1]
        i = 0
        for k, x in enumerate(m):
            if i < len(r): A.e(r[i]); i += 1
            A.e(x)
        while i < len(r): A.e(r[i]); i += 1
        A.e("s_waitcnt lgkmcnt(0)\ns_barrier")
    A.e(f"s_mov_b32 {sSlot}, 0")
    A.e("s_barrier")
    A.stamp(1)
    addr()
    for x in reads(0): A.e(x)
    A.e("s_waitcnt lgkmcnt(0)\ns_barrier")
    body(1, first=True)
    rem = nst - 2
    assert rem % 2 == 0
    lp = A.newlab(tag + "_cs")
    A.e(f"s_mov_b32 {sJ}, 0")
    A.lab(lp)
    body(0); body(1)
    A.e(f"s_add_u32 {sJ}, {sJ}, 1\ns_cmp_lt_u32 {sJ}, {rem//2}\ns_cbranch_scc1 {lp}")
    ms = mfmas(1)
    LAG = 8
    for k, x in enumerate(ms):
        A.e(x)
        if dump and k >= LAG: A.e(dump(mf[k-LAG][0]))
    if dump:
        A.e("s_nop 7")
        for k in range(max(0, len(ms)-LAG), len(ms)): A.e(dump(mf[k][0]))
    A.stamp(2)

def consumer_sub2(A, tag, nst, NS, stage_bytes, bases, frags_of, nfreg, FB, mf, sSlot, sJ, tail=None,
                  mfma="v_mfma_f32_16x16x32_bf16", slot0=0):
    def addr():
        for vc, vb in bases: A.e(f"v_add_u32 v{vc}, {sSlot}, v{vb}")
        A.e(f"s_add_u32 {sSlot}, {sSlot}, {stage_bytes}\ns_cmp_eq_u32 {sSlot}, {NS*stage_bytes}\ns_cselect_b32 {sSlot}, 0, {sSlot}")
    def reads(kc):
        out = []
        for off, ins in frags_of(kc):
            for (n, so, fmt) in ins: out.append(fmt.format(dst=vr(FB + kc*nfreg + off + so, n)))
        return out
    def mfmas(kc, first=False):
        return [f"{mfma} {vr(acc,4)}, {vr(FB+kc*nfreg+a,4)}, {vr(FB+kc*nfreg+b,4)}, {'0' if first else vr(acc,4)}" for acc, a, b in mf]
    def step(r, m):
        if ABL.get("noread"): r = []
        if ABL.get("nomfma"): m = m[:1]
        i = 0
        for x in m:
            if i < len(r): A.e(r[i]); i += 1
            A.e(x)
        while i < len(r): A.e(r[i]); i += 1
        A.e("s_waitcnt lgkmcnt(0)")
    def stage(first=False):
        step(reads(1), mfmas(0, first))
        A.e("s_barrier"); addr()
        step(reads(0), mfmas(1))
    A.e(f"s_mov_b32 {sSlot}, {slot0*stage_bytes}")
    A.e("s_barrier")
    A.stamp(1)
    if ABL.get("clk") == tag: A.e("s_memtime s[96:97]")
    addr()
    for x in reads(0): A.e(x)
    A.e("s_waitcnt lgkmcnt(0)")
    stage(first=True)
    lp = A.newlab(tag + "_c2")
    A.e(f"s_mov_b32 {sJ}, 0")
    A.lab(lp)
    stage()
    A.e(f"s_add_u32 {sJ}, {sJ}, 1\ns_cmp_lt_u32 {sJ}, {nst-2}\ns_cbranch_scc1 {lp}")
    step(reads(1), mfmas(0))
    A.e("s_barrier")
    if ABL.get("clk") == tag: A.e("s_memtime s[10:11]\ns_memrealtime s[82:83]\ns_waitcnt lgkmcnt(0)\ns_sub_u32 s84, s10, s96")
    ms = mfmas(1)
    return ms

def drain(A, ms, accs, fn, LAG=8):
    for k, x in enumerate(ms):
        A.e(x)
        if k >= LAG: A.e(fn(accs[k-LAG]))
    A.e("s_nop 7")
    for k in range(max(0, len(ms)-LAG), len(ms)): A.e(fn(accs[k]))

def ring_unrolled(A, nst, slot_addr, stat, nstat_reg, SB, strm, ring, RB, look, mf_of, pre_bar, post_bar, after_last=None):
    n = len(strm); assert n % ring == 0 and look < ring
    q = []
    def rd_stat(p, tagid):
        return [(fmt.format(dst=vr(SB + p*nstat_reg + off + so, nn)), tagid) for off, ins in stat for (nn, so, fmt) in ins]
    def rd_strm(j, tagid):
        return [(fmt.format(dst=vr(RB + (j % ring)*4 + so, nn)), tagid) for (nn, so, fmt) in strm[j]]
    def emit_reads(lst):
        for s_, t in lst: A.e(s_); q.append(t)
    def need(tags):
        last = -1
        for i, t in enumerate(q):
            if t in tags: last = i
        if last >= 0:
            A.e(f"s_waitcnt lgkmcnt({min(15, len(q) - 1 - last)})")
            del q[:last+1]
    def bar(i):
        if i in pre_bar: pre_bar[i]()
        A.e("s_barrier")
        if i in post_bar: post_bar[i]()
    bar(0); A.stamp(1)
    if A.stamps: A.e("s_waitcnt lgkmcnt(0)")
    slot_addr(0)
    emit_reads(rd_stat(0, (0, 's')))
    for j in range(look): emit_reads(rd_strm(j, (0, j)))
    for i in range(nst):
        p = i & 1
        for j in range(n):
            pend = []
            jn = j + look
            if jn < n: pend = rd_strm(jn, (i, jn))
            elif i + 1 < nst:
                if jn == n:
                    bar(i+1); slot_addr(i+1)
                    pend = rd_stat(1-p, (i+1, 's')) + rd_strm(0, (i+1, 0))
                else: pend = rd_strm(jn - n, (i+1, jn - n))
            elif jn == n: bar(nst)
            need({(i, j), (i, 's')})
            ms = mf_of(j, SB + p*nstat_reg, RB + (j % ring)*4, i == 0)
            k = 0
            per = (len(pend) + len(ms) - 1)//len(ms)
            for m in ms:
                A.e(m)
                emit_reads(pend[k:k+per]); k += per
            emit_reads(pend[k:])

def consumer_ring(A, tag, nst, NS, stage_bytes, bases, stat, nstat_reg, SB, strm, ring, RB, look, mf_of, sSlot, sJ,
                  pre_bar=None, post_bar=None, pre_bar0=None, addr_extra=None, pre_bar1=None, pre_bar2=None):
    n = len(strm); assert n % ring == 0 and look < ring
    q = []
    xq = []
    def addr():
        if callable(addr_extra): addr_extra()
        elif addr_extra: A.e(addr_extra)
        for vc, vb in bases: A.e(f"v_add_u32 v{vc}, {sSlot}, v{vb}")
        A.e(f"s_add_u32 {sSlot}, {sSlot}, {stage_bytes}\ns_cmp_eq_u32 {sSlot}, {NS*stage_bytes}\ns_cselect_b32 {sSlot}, 0, {sSlot}")
    def rd_stat(p, tagid):
        out = []
        for off, ins in stat:
            for (nn, so, fmt) in ins: out.append((fmt.format(dst=vr(SB + p*nstat_reg + off + so, nn)), tagid))
        return out
    def rd_strm(j, tagid):
        return [(fmt.format(dst=vr(RB + (j % ring)*4 + so, nn)), tagid) for (nn, so, fmt) in strm[j]]
    def emit_reads(lst):
        for s, t in lst: A.e(s); q.append(t)
    def need(tags):
        last = -1
        for i, t in enumerate(q):
            if t in tags: last = i
        if last >= 0:
            rem = len(q) - 1 - last
            A.e(f"s_waitcnt lgkmcnt({min(15, rem)})")
            del q[:last+1]
    def stage(p, first=False, last=False):
        for j in range(n):
            pend = []
            jn = j + look
            if jn < n: pend = rd_strm(jn, ('c', jn))
            elif not last:
                if jn == n:
                    assert not xq
                    if first and pre_bar1: A.e(pre_bar1)
                    elif pre_bar: A.e(pre_bar)
                    A.e("s_barrier"); addr()
                    if post_bar: xq.extend(post_bar())
                    pend = rd_stat(1-p, ('n', 's')) + rd_strm(0, ('n', 0))
                else: pend = rd_strm(jn - n, ('n', jn - n))
            elif jn == n:
                A.e("s_barrier")
            need({('c', j), ('c', 's')})
            ms = mf_of(j, SB + p*nstat_reg, RB + (j % ring)*4, first)
            k = 0
            per = (len(pend) + len(ms) - 1)//len(ms)
            for m in ms:
                A.e(m)
                emit_reads(pend[k:k+per]); k += per
            emit_reads(pend[k:])
            if xq:
                x = xq.pop(0)
                if not last: A.e(x)
        for i, t in enumerate(q):
            if t[0] == 'n': q[i] = ('c', t[1])
    A.e(f"s_mov_b32 {sSlot}, 0")
    if pre_bar0: A.e(pre_bar0)
    A.e("s_barrier")
    if A.stamps: A.stamp(1); A.e("s_waitcnt lgkmcnt(0)")
    addr()
    emit_reads(rd_stat(0, ('c', 's')))
    for j in range(look): emit_reads(rd_strm(j, ('c', j)))
    stage(0, first=True)
    q0 = list(q); x0 = list(xq)
    rem = nst - 2
    assert rem % 2 == 0
    lp = A.newlab(tag + "_cr")
    A.e(f"s_mov_b32 {sJ}, 0")
    A.lab(lp)
    stage(1); stage(0)
    assert q == q0, (q, q0)
    assert len(xq) == len(x0)
    A.e(f"s_add_u32 {sJ}, {sJ}, 1\ns_cmp_lt_u32 {sJ}, {rem//2}\ns_cbranch_scc1 {lp}")
    stage(1, last=True)
    A.stamp(2)
```

```python
class Asm:
    def __init__(self):
        self.L = []
        self.uid = 0
    def e(self, s):
        for line in s.strip("\n").split("\n"):
            line = line.strip()
            if not line: continue
            if line.endswith(":") and " " not in line: self.L.append(line)
            else: self.L.append("  " + line)
    def c(self, s): self.L.append("  ; " + s)
    def lab(self, name): self.L.append(name + ":")
    def newlab(self, base):
        self.uid += 1
        return f"L_{base}_{self.uid}"
    def text(self): return "\n".join(self.L) + "\n"
    stamps = False
    sbase = 0
    def stamp(self, i):
        i += self.sbase
        if self.stamps: self.e(f"s_memrealtime s[{80+2*i}:{81+2*i}]")
    def stamp_init(self):
        if self.stamps:
            self.e("s_memrealtime s[80:81]\ns_memtime s[96:97]")
            for i in range(1, 7): self.e(f"s_mov_b32 s{80+2*i}, 0")
    dbgwave = None
    def stamp_out(self, kid):
        if self.stamps and self.dbgwave is not None:
            l = self.newlab("dbgx")
            self.e(f"""
            s_mov_b64 exec, -1
            s_waitcnt vmcnt(0)
            s_memrealtime s[94:95]
            s_load_dwordx2 s[4:5], s[0:1], 72
            s_cmp_lg_u32 s100, {self.dbgwave}
            s_cbranch_scc1 {l}
            s_waitcnt lgkmcnt(0)
            s_not_b32 s80, s80
            v_mov_b32 v4, 0
            """)
            for j in range(8): self.e(f"v_writelane_b32 v4, s{80+2*j}, {j}")
            self.e(f"""
            v_mbcnt_lo_u32_b32 v1, -1, 0
            v_lshlrev_b32 v2, 2, v1
            s_cmp_lt_u32 s99, 64
            s_cselect_b32 s6, 32, 0
            v_add_u32 v2, s6, v2
            s_mov_b64 exec, 255
            global_atomic_umax v2, v4, s[4:5]
            {l}:
            """)
            return
        if self.stamps:
            self.e(f"""
            s_mov_b64 exec, -1
            s_waitcnt vmcnt(0)
            s_memrealtime s[94:95]
            s_memtime s[6:7]
            s_load_dwordx2 s[4:5], s[0:1], 80
            v_mbcnt_lo_u32_b32 v1, -1, 0
            v_mbcnt_hi_u32_b32 v1, -1, v1
            v_lshrrev_b32 v2, 6, v0
            s_lshl_b32 s99, s99, 3
            v_add_u32 v2, s99, v2
            v_lshlrev_b32 v2, 5, v2
            v_add_u32 v2, {(28<<20) + kid*131072}, v2
            s_waitcnt lgkmcnt(0)
            v_mov_b32 v4, s80
            v_mov_b32 v5, s82
            v_mov_b32 v6, s84
            v_mov_b32 v7, s86
            v_mov_b32 v8, s88
            v_mov_b32 v9, s90
            v_mov_b32 v10, s92
            v_mov_b32 v11, s94
            v_cmp_eq_u32 vcc, 0, v1
            s_and_saveexec_b64 s[8:9], vcc
            global_store_dwordx4 v2, v[4:7], s[4:5]
            global_store_dwordx4 v2, v[8:11], s[4:5] offset:16
            s_sub_u32 s6, s6, s96
            v_mov_b32 v4, s6
            v_add_u32 v2, 0x10000, v2
            global_store_dword v2, v4, s[4:5]
            """)
    def srd(self, d, lo, hi, nbytes):
        self.e(f"s_mov_b32 s{d}, s{lo}\ns_and_b32 s{d+1}, s{hi}, 0xffff\ns_mov_b32 s{d+2}, {nbytes}\ns_mov_b32 s{d+3}, 0x20000")
    def srd_off(self, d, lo, hi, off, nbytes):
        self.e(f"s_add_u32 s{d}, s{lo}, {off}\ns_addc_u32 s{d+1}, s{hi}, 0\ns_and_b32 s{d+1}, s{d+1}, 0xffff\ns_mov_b32 s{d+2}, {nbytes}\ns_mov_b32 s{d+3}, 0x20000")
    def sdiv(self, q, src, d, tmp):
        self.e(f"s_mov_b32 {tmp}, {(2**32 + d - 1)//d}\ns_mul_hi_u32 {q}, {src}, {tmp}")
    def vdiv(self, q, src, d, stmp):
        self.e(f"s_mov_b32 {stmp}, {(2**32 + d - 1)//d}\nv_mul_hi_u32 {q}, {src}, {stmp}")

def vr(a, n=1):
    return f"v{a}" if n == 1 else f"v[{a}:{a+n-1}]"
def sr(a, n=1):
    return f"s{a}" if n == 1 else f"s[{a}:{a+n-1}]"

def kernel_head(A, name):
    A.L += [".text", f".globl {name}", ".p2align 8", f".type {name},@function", f"{name}:"]
def kernel_desc(A, name, vgpr, sgpr=102, accum=None):
    if accum is None: accum = (vgpr + 3)//4*4
    A.L += ['.section .rodata,"a"', ".p2align 6", f".amdhsa_kernel {name}",
            f"  .amdhsa_next_free_vgpr {vgpr}", f"  .amdhsa_next_free_sgpr {sgpr}", f"  .amdhsa_accum_offset {accum}",
            "  .amdhsa_group_segment_fixed_size 0", "  .amdhsa_kernarg_size 88", "  .amdhsa_user_sgpr_count 2",
            "  .amdhsa_user_sgpr_kernarg_segment_ptr 1", "  .amdhsa_system_sgpr_workgroup_id_x 1",
            ".end_amdhsa_kernel"]
```

```python
from asm import *
from layout import *
import struct
def f2u(x): return struct.unpack("<I", struct.pack("<f", x))[0]

def reduce32(A, a, b):
    for n in (8,4,2,1):
        A.e(f"s_nop 1\nv_add_f32_dpp v{a}, v{a}, v{a} row_ror:{n} row_mask:0xf bank_mask:0xf")
    A.e(f"v_mov_b32 v{b}, v{a}\ns_nop 1\nv_permlane16_swap_b32 v{a}, v{b}\ns_nop 1\nv_add_f32 v{a}, v{a}, v{b}")

def layernorm(A, X, P, t0, t1, t2, t3, keep_f32):
    p = lambda r: f"v[{r}:{r+1}]"
    u = t0 + 4
    A.e(f"v_pk_add_f32 {p(t0)}, {p(X)}, {p(X+2)}\nv_pk_add_f32 {p(t2)}, {p(X+4)}, {p(X+6)}")
    for i in (8, 12): A.e(f"v_pk_add_f32 {p(t0)}, {p(t0)}, {p(X+i)}\nv_pk_add_f32 {p(t2)}, {p(t2)}, {p(X+i+2)}")
    A.e(f"v_pk_add_f32 {p(t0)}, {p(t0)}, {p(X+16)}\nv_pk_add_f32 {p(t0)}, {p(t0)}, {p(t2)}\nv_add_f32 v{t0}, v{t0}, v{t1}")
    reduce32(A, t0, t1)
    A.e(f"v_mul_f32 v{t0}, {hex(f2u(-1.0/576))}, v{t0}\nv_mov_b32 v{t1}, v{t0}")
    A.e(f"v_pk_add_f32 {p(u)}, {p(X)}, {p(t0)}\nv_pk_mul_f32 {p(t2)}, {p(u)}, {p(u)}")
    for i in range(2, 18, 2):
        A.e(f"v_pk_add_f32 {p(u)}, {p(X+i)}, {p(t0)}\nv_pk_fma_f32 {p(t2)}, {p(u)}, {p(u)}, {p(t2)}")
    A.e(f"v_add_f32 v{t2}, v{t2}, v{t3}")
    reduce32(A, t2, t3)
    A.e(f"v_mul_f32 v{t2}, {hex(f2u(1.0/576))}, v{t2}")
    A.e(f"v_cvt_pk_bf16_f32 v{u}, v{t0}, v{t2}")
    A.e(f"v_lshlrev_b32 v{t0}, 16, v{u}\nv_lshlrev_b32 v{t1}, 16, v{u}\nv_and_b32 v{t2}, 0xffff0000, v{u}")
    A.e(f"v_add_f32 v{t2}, {hex(f2u(1e-5))}, v{t2}")
    A.e(f"v_cvt_pk_bf16_f32 v{t2}, v{t2}, v{t2}\nv_and_b32 v{t2}, 0xffff0000, v{t2}")
    A.e(f"v_sqrt_f32 v{t2}, v{t2}")
    for i in range(0, 18, 2): A.e(f"v_pk_add_f32 {p(X+i)}, {p(X+i)}, {p(t0)}")
    A.e(f"v_cvt_pk_bf16_f32 v{t2}, v{t2}, v{t2}\nv_and_b32 v{t2}, 0xffff0000, v{t2}")
    A.e(f"v_rcp_f32 v{t2}, v{t2}")
    for i in range(9): A.e(f"v_cvt_pk_bf16_f32 v{P+i}, v{X+2*i}, v{X+2*i+1}")
    A.e(f"v_mov_b32 v{t3}, v{t2}")
    for i in range(9): A.e(f"v_lshlrev_b32 v{X+2*i}, 16, v{P+i}\nv_and_b32 v{X+2*i+1}, 0xffff0000, v{P+i}")
    for i in range(0, 18, 2): A.e(f"v_pk_mul_f32 {p(X+i)}, {p(X+i)}, {p(t2)}")
    for i in range(9): A.e(f"v_cvt_pk_bf16_f32 v{P+i}, v{X+2*i}, v{X+2*i+1}")
    if keep_f32:
        for i in range(9): A.e(f"v_lshlrev_b32 v{X+2*i}, 16, v{P+i}\nv_and_b32 v{X+2*i+1}, 0xffff0000, v{P+i}")

def code_prefetch(A, first, last_lab, vidx, vt, sb, backward=False):
    pc = A.newlab("pc")
    A.e(f"""
    s_getpc_b64 s[{sb}:{sb+1}]
    {pc}:
    {"s_sub_u32" if backward else "s_add_u32"} s{sb}, s{sb}, {f"{pc}-{first}" if backward else f"{first}-{pc}"}
    {"s_subb_u32" if backward else "s_addc_u32"} s{sb+1}, s{sb+1}, 0
    v_lshlrev_b32 {vt}, 7, {vidx}
    v_min_u32 {vt}, {last_lab}-{first}-4, {vt}
    global_load_dword {vt}, {vt}, s[{sb}:{sb+1}]
    """)

def k1_prefetch(A, opt):
    n = 0
    if opt.get("pf_code", True):
        A.e("s_and_b32 s30, s25, 1\ns_lshl_b32 s30, s30, 8\nv_add_u32 v60, s30, v0")
        code_prefetch(A, "gemm1_qkv_kernel", "L_code_end", "v60", "v60", 50); n += 1
    if opt.get("pf_wqkv", True):
        A.srd(44, 36, 37, SZ_WQKV)
        A.e("s_mul_i32 s30, s25, 162\nv_add_u32 v61, s30, v0")
        A.vdiv("v62", "v61", 9, "s30")
        A.e("v_mul_u32_u24 v63, 9, v62\nv_sub_u32 v61, v61, v63\nv_mul_u32_u24 v62, 3456, v62")
        A.vdiv("v63", "v61", 3, "s30")
        A.e(f"""
        v_mul_u32_u24 v59, 3, v63
        v_sub_u32 v61, v61, v59
        v_mul_u32_u24 v63, 1152, v63
        v_add_u32 v62, v62, v63
        v_lshl_add_u32 v62, v61, 7, v62
        v_mov_b32 v63, {OOB}
        v_cmp_gt_u32 vcc, 162, v0
        s_lshr_b32 s30, s24, 1
        s_mul_i32 s30, s30, 288
        s_and_b32 s30, s30, 0xffffff80
        v_cndmask_b32 v62, v63, v62, vcc
        buffer_load_dword v57, v62, s[44:47], s30 offen
        """); n += 1
        A.srd(44, 38, 39, SZ_WO)
        A.e(f"""
        v_lshlrev_b32 v62, 7, v0
        v_cmp_gt_u32 vcc, 21, v0
        s_mul_i32 s30, s2, {21*128}
        s_nop 0
        v_cndmask_b32 v62, v63, v62, vcc
        buffer_load_dword v57, v62, s[44:47], s30 offen
        """); n += 1
    rows = opt.get("pf_w1_rows", 0)
    if rows:
        A.srd(44, 40, 41, SZ_W1)
        tot = rows*9//32
        fl = opt.get("pf_w1_fl", " nt")
        A.e(f"s_mul_i32 s30, s24, 1152\ns_mul_i32 s33, s25, 9216\ns_add_u32 s33, s33, s30\nv_mov_b32 v63, {OOB}")
        for j in range((tot+255)//256):
            A.e(f"v_add_u32 v61, {j*256}, v0")
            A.vdiv("v62", "v61", 9, "s30")
            A.e(f"""
            v_mul_u32_u24 v58, 9, v62
            v_sub_u32 v58, v61, v58
            v_mul_u32_u24 v62, {32*9216}, v62
            v_lshl_add_u32 v62, v58, 7, v62
            v_cmp_gt_u32 vcc, {tot}, v61
            s_nop 1
            v_cndmask_b32 v62, v63, v62, vcc
            buffer_load_dword v57, v62, s[44:47], s33 offen{fl}
            """); n += 1
    return n

HSTR = 1216
def ln_body(A, opt, wgreg="s2"):
    st = opt.get("ln_st", "")
    LB = opt.get("ln_lds", 0)
    A.e(f"""
    v_and_b32 v2, 31, v0
    v_lshrrev_b32 v3, 5, v0
    v_mul_u32_u24 v5, 1152, v3
    v_lshl_add_u32 v5, v2, 2, v5
    s_mul_i32 s28, {wgreg}, 9216
    """)
    if not opt.get("fused"): A.e("s_waitcnt lgkmcnt(0)")
    A.srd(8, 4, 5, SZ_X)
    for i in range(9):
        A.e(f"buffer_load_dword v{10+i}, v5, s[8:11], s28 offen offset:{128*i}")
    A.srd_off(12, 6, 7, WS_XN, SZ_X)
    A.srd_off(16, 6, 7, WS_HT, SZ_X)
    A.srd_off(20, 6, 7, WS_KV, SZ_KV)
    npf = 0 if opt.get('fused') else k1_prefetch(A, opt)
    A.e(f"""
    v_mul_u32_u24 v9, {HSTR}, v3
    v_lshl_add_u32 v9, v2, 2, v9
    v_mov_b32 v40, 0
    v_lshlrev_b32 v44, 2, v0
    v_mov_b32 v45, {OOB}
    v_cmp_gt_u32 vcc, 50, v0
    s_mul_i32 s30, {wgreg}, 200
    s_nop 0
    v_cndmask_b32 v44, v45, v44, vcc
    buffer_store_dword v40, v44, s[20:23], s30 offen{st}
    """)
    if not opt.get('fused'):
        A.srd_off(20, 6, 7, WS_FL, SZ_FL)
        A.e(f"""
        v_cmp_gt_u32 vcc, 64, v0
        s_lshl_b32 s30, {wgreg}, 8
        v_lshlrev_b32 v44, 2, v0
        v_cndmask_b32 v44, v45, v44, vcc
        buffer_store_dword v40, v44, s[20:23], s30 offen{st}
        """)
        npf += 1
    if LB: A.e(f"v_add_u32 v9, {LB}, v9")
    A.e(f"s_waitcnt vmcnt({min(63, 1+npf)})")
    A.stamp(1)
    for i in range(9):
        A.e(f"v_lshlrev_b32 v{20+2*i}, 16, v{10+i}\nv_and_b32 v{21+2*i}, 0xffff0000, v{10+i}")
    layernorm(A, 20, 10, 40, 41, 42, 43, True)
    for i in range(9):
        A.e(f"ds_write_b32 v9, v{10+i} offset:{8*HSTR+128*i}")
    layernorm(A, 20, 46, 40, 41, 42, 43, False)
    for i in range(9):
        A.e(f"ds_write_b32 v9, v{46+i} offset:{128*i}")
    A.e(f"""
    v_bfe_u32 v7, v0, 2, 2
    v_mul_u32_u24 v7, {HSTR}, v7
    v_lshrrev_b32 v8, 4, v0
    v_lshl_add_u32 v7, v8, 5, v7
    v_and_b32 v8, 3, v0
    v_lshl_add_u32 v7, v8, 3, v7
    v_and_b32 v8, 7, v0
    v_mul_u32_u24 v6, {HSTR}, v8
    v_lshlrev_b32 v4, 4, v8
    v_lshrrev_b32 v8, 5, v0
    v_lshl_add_u32 v6, v8, 6, v6
    v_bfe_u32 v8, v0, 3, 2
    v_lshl_add_u32 v6, v8, 3, v6
    v_lshrrev_b32 v8, 3, v0
    v_lshl_add_u32 v4, v8, 15, v4
    v_lshlrev_b32 v5, 4, v0
    v_lshrrev_b32 v8, 6, v0
    s_lshl_b32 s32, {wgreg}, 7
    v_readfirstlane_b32 s31, v8
    """)
    if LB: A.e(f"v_add_u32 v6, {LB}, v6\nv_add_u32 v7, {LB}, v7")
    A.e("s_waitcnt lgkmcnt(0)\ns_barrier")
    skip = A.newlab("k1skip")
    for r in range(3):
        if r == 2:
            A.e(f"s_cmp_lg_u32 s31, 0\ns_cbranch_scc1 {skip}")
        b = 20 + 8*r
        A.e(f"ds_read_b64_tr_b16 v[{b}:{b+1}], v7 offset:{512*r}\nds_read_b64_tr_b16 v[{b+2}:{b+3}], v7 offset:{512*r+4*HSTR}")
        A.e(f"ds_read_b64 v[{b+4}:{b+5}], v6 offset:{8*HSTR+512*r}\nds_read_b64 v[{b+6}:{b+7}], v6 offset:{8*HSTR+512*r+32}")
        A.e(f"""
        s_add_u32 s33, s28, {4096*r}
        s_add_u32 s30, s32, {32*32768*r}
        s_waitcnt lgkmcnt(2)
        buffer_store_dwordx4 v[{b}:{b+3}], v5, s[16:19], s33 offen{st}
        s_waitcnt lgkmcnt(0)
        buffer_store_dwordx4 v[{b+4}:{b+7}], v4, s[12:15], s30 offen{st}
        """)
    A.lab(skip)

def gen_k1(A, name, opt):
    kernel_head(A, name)
    done = A.newlab("k1done")
    A.e(f"""
    s_cmp_ge_u32 s2, 256
    s_cbranch_scc1 {done}_x
    """)
    A.stamp_init()
    A.e(f"""
    s_load_dwordx2 s[4:5], s[0:1], {KA_X}
    s_load_dwordx2 s[6:7], s[0:1], {KA_WS}
    s_load_dwordx4 s[36:39], s[0:1], {KA_WQKV}
    s_load_dwordx2 s[40:41], s[0:1], {KA_W1}
    s_and_b32 s24, s2, 7
    s_lshr_b32 s25, s2, 3
    """)
    ln_body(A, opt)
    A.lab(done)
    A.stamp_out(0)
    A.lab(done + "_x")
    A.e("s_endpgm")
    kernel_desc(A, name, 64, 102)
    return f"; @launch kernel={name} grid=(256,1,1) block=(256,1,1) lds={16*HSTR}"
```
